```python
import torch

def _softmax(x, axis=-1):
    return torch.softmax(x, dim=axis)
def _gelu(x):
    return torch.nn.functional.gelu(x, approximate="tanh")
def _silu(x):
    return torch.nn.functional.silu(x)
def _sigmoid(x):
    return torch.sigmoid(x)
def _layernorm(x, axis=-1, eps=1e-5):
    m = x.mean(dim=axis, keepdim=True)
    v = x.var(dim=axis, keepdim=True, unbiased=False)
    return (x - m) / torch.sqrt(v + eps)
def _scatter_add(tgt, idx, src, axis=0):
    return tgt.clone().index_add_(axis, idx, src)
def _segment_sum(src, seg, n):
    out = torch.zeros((n,) + src.shape[1:], dtype=src.dtype)
    return out.index_add_(0, seg, src)
def _pad(x, pw):
    flat = tuple(v for pair in reversed(pw) for v in pair)
    return torch.nn.functional.pad(x, flat)

kernel_name = 'recurrent_scan__gqa_block_cached__glu_gated_bilinear__decode'

def setup_inputs():

    _w = (lambda a: (lambda t: t.to(torch.bfloat16) if t.is_floating_point() else t)(torch.as_tensor(a)))
    def _A_setup():
        B, Sq, D = 2, 1, 640
        Hq, Hkv, Sk, Dh = 32, 32, 4096, 192
        assert Hq % Hkv == 0, (Hq, Hkv)
        return {
            "x": _w((lambda *s: torch.randn(*s, dtype=torch.bfloat16) * 0.2)(B, Sq, D)),
            "k_cache": _w((lambda *s: torch.randn(*s, dtype=torch.bfloat16) * 1.6)(B, Hkv, Sk, Dh)),
            "v_cache": _w((lambda *s: torch.randn(*s, dtype=torch.bfloat16) * 1.6)(B, Hkv, Sk, Dh)),
            "wq": _w((lambda *s: torch.randn(*s, dtype=torch.bfloat16) * 1.6)(D, Hq * Dh) * (D ** -0.5)),
            "wo": _w((lambda *s: torch.randn(*s, dtype=torch.bfloat16) * 1.6)(Hq * Dh, D) * ((Hq * Dh) ** -0.5)),
        }
    _A_in = _A_setup()

    def _B_setup():
        B, S, D, F = 2, 1, 640, 1536
        return {
            "x": _w((lambda *s: torch.randn(*s, dtype=torch.bfloat16) * 0.2)(B, S, D)),
            "w_gate": _w((lambda *s: torch.randn(*s, dtype=torch.bfloat16) * 0.8)(D, F) * (D ** -0.5)),
            "w_up": _w((lambda *s: torch.randn(*s, dtype=torch.bfloat16) * 0.8)(D, F) * (D ** -0.5)),
            "w_down": _w((lambda *s: torch.randn(*s, dtype=torch.bfloat16) * 0.8)(F, D) * (F ** -0.5)),
        }
    _B_in = _B_setup()

    return {
        "A_x": _A_in["x"],
        "A_k_cache": _A_in["k_cache"],
        "A_v_cache": _A_in["v_cache"],
        "A_wq": _A_in["wq"],
        "A_wo": _A_in["wo"],
        "B_x": _B_in["x"],
        "B_w_gate": _B_in["w_gate"],
        "B_w_up": _B_in["w_up"],
        "B_w_down": _B_in["w_down"],
    }

def reference(A_x, A_k_cache, A_v_cache, A_wq, A_wo, B_x, B_w_gate, B_w_up, B_w_down):
    def _A_ref(x, k_cache, v_cache, wq, wo):
        B, Sq, D = x.shape
        Hq, Dh = 32, 192
        Hkv = k_cache.shape[1]
        rep = Hq // Hkv
        q = (lambda x, *d: x.permute(*d))((x @ wq).reshape(B, Sq, Hq, Dh), 0, 2, 1, 3)
        k = (lambda x, n, axis: torch.repeat_interleave(x, n, dim=axis))(k_cache, rep, axis=1)
        v = (lambda x, n, axis: torch.repeat_interleave(x, n, dim=axis))(v_cache, rep, axis=1)
        scores = torch.einsum("bhqd,bhkd->bhqk", q, k) * (Dh ** -0.5)
        p = _softmax(scores, axis=-1)
        o = torch.einsum("bhqk,bhkd->bhqd", p, v)
        return (lambda x, *d: x.permute(*d))(o, 0, 2, 1, 3).reshape(B, Sq, Hq * Dh) @ wo

    def _B_ref(x, w_gate, w_up, w_down):
        g = torch.einsum("bsd,df->bsf", x, w_gate)
        u = torch.einsum("bsd,df->bsf", x, w_up)
        h = g * u
        return torch.einsum("bsf,fd->bsd", h, w_down)

    x = A_x
    xn = _layernorm(x, axis=-1)
    s = _A_ref(xn, A_k_cache, A_v_cache, A_wq, A_wo)
    g = _silu(_B_ref(xn, B_w_gate, B_w_up, B_w_down))
    return x + s * g
```

```python
import sys, argparse
KNAME = "recurrent_scan__gqa_block_cached__glu_gated_bilinear__decode_kernel"
HEADER = open("recurrent_scan__gqa_block_cached__glu_gated_bilinear__decode.s.ref").read().split("; Override launch")[0]

GEN_OFF = 0
LX_OFF = 4096
QS_OFF = LX_OFF + 256 * 128
E1_OFF = QS_OFF + 32 * 3 * 8192
E2_OFF = E1_OFF + 256 * 1024
G1_OFF = E2_OFF + 40 * 32 * 256
G2_OFF = G1_OFF + 24 * 10 * 2048
WS_USED = G2_OFF + 40 * 24 * 256
STAMP_OFF = 4 << 20
WS_BYTES = 402653184
L_XN = 0
L_Q = 2048
L_ML = 2432
L_OBF = 2560
L_HS = 3328
L_PART = 3840
L_WO = 9984
LDS_BYTES = L_WO + 30720
TAGC = 0x9E3779B1
LOG2E = 0x3FB8AA3B
SCALE = 0x3D93CD3A
DPPF = "row_mask:0xf bank_mask:0xf"

def gen(R=42, amap="lin", omap="xcd", stamps=False, wo_flags="nt", w_flags="nt", red_base=216, WIN=5, HW=4, LK=10,
        qsleep=40, dbg=()):
    L = []
    A = lambda s: L.append("  " + s)
    LB = lambda s: L.append(s + ":")
    C = lambda s: L.append("  ; " + s)
    def stamp(k):
        if stamps:
            A(f"s_memrealtime s[{64+2*k}:{65+2*k}]")
    def srd(d, plo, size):
        A(f"s_mov_b32 s{d}, s{plo}"); A(f"s_mov_b32 s{d+1}, s{plo+1}")
        A(f"s_mov_b32 s{d+2}, {size}"); A(f"s_mov_b32 s{d+3}, 0x20000")
    def amasks(base, tmp):
        A(f"v_and_b32 v{tmp}, 1, v0")
        A(f"v_lshlrev_b32 v{tmp}, 4, v{tmp}")
        A("s_mov_b32 s48, 0xffff")
        A(f"v_lshlrev_b32_e64 v{tmp}, v{tmp}, s48")
        for r in range(4):
            A(f"s_mov_b32 s48, 0x{0x03030303 << (2*r):08x}")
            A("s_mov_b32 s49, s48")
            A(f"v_cndmask_b32_e64 v{base+r}, 0, v{tmp}, s[48:49]")
    def xrow_reduce(op, v, t):
        A(f"v_mov_b32 v{t}, v{v}"); A("s_nop 1")
        A(f"v_permlane16_swap_b32 v{t}, v{v}")
        A(f"{op} v{v}, v{v}, v{t}")
        A(f"v_mov_b32 v{t}, v{v}"); A("s_nop 1")
        A(f"v_permlane32_swap_b32 v{t}, v{v}")
        A(f"{op} v{v}, v{v}, v{t}")
    def rne(v):
        A(f"v_cvt_pk_bf16_f32 v{v}, v{v}, v{v}")
        A(f"v_and_b32 v{v}, 0xffff0000, v{v}")
    def epilogue(P, Q, G, kind):
        for a in (P, Q, P + 1, Q + 1):
            A(f"v_permlane32_swap_b32 v{a}, v{a+2}")
        A(f"v_mov_b32 v{G+1}, s31"); A(f"v_mov_b32 v{G+3}, s31")
        lo = lambda d, x: A(f"v_add_f32_dpp v{d}, v{x+2}, v{x} row_shl:8 {DPPF}")
        hi = lambda d, x: A(f"v_add_f32_dpp v{d}, v{x}, v{x+2} row_shr:8 {DPPF}")
        if kind == "b":
            lo(G, P); lo(G + 2, P + 1); hi(G, Q); hi(G + 2, Q + 1)
        else:
            lo(G, P); lo(G + 2, Q); hi(G, P + 1); hi(G + 2, Q + 1)
    def poll(label, loads, tagregs, tmp, sleep=0, pre=0):
        while pre > 0:
            A(f"s_sleep {min(pre, 127)}"); pre -= 127
        if label in dbg:
            for ld in loads: A(ld)
            A("s_waitcnt vmcnt(0)")
            return
        A("s_mov_b32 s50, 0")
        LB(label)
        for ld in loads: A(ld)
        A("s_add_u32 s50, s50, 1")
        A("s_waitcnt vmcnt(0)")
        A(f"v_xor_b32 v{tmp}, s31, v{tagregs[0]}")
        rest = list(tagregs[1:])
        while rest:
            if len(rest) >= 2:
                A(f"v_xor_b32 v{tmp+1}, s31, v{rest[0]}"); A(f"v_xor_b32 v{tmp+2}, s31, v{rest[1]}")
                A(f"v_or3_b32 v{tmp}, v{tmp}, v{tmp+1}, v{tmp+2}"); rest = rest[2:]
            else:
                A(f"v_xor_b32 v{tmp+1}, s31, v{rest[0]}"); A(f"v_or_b32 v{tmp}, v{tmp}, v{tmp+1}"); rest = rest[1:]
        A(f"v_cmp_ne_u32 vcc, 0, v{tmp}")
        A("s_cmp_gt_u32 s50, 0x40000")
        A(f"s_cbranch_scc1 {label}_x")
        if sleep:
            A(f"s_cbranch_vccz {label}_x")
            A(f"s_sleep {sleep}")
            A(f"s_branch {label}")
        else:
            A(f"s_cbranch_vccnz {label}")
        LB(label + "_x")
    def wgmap(kind, sh, sj):
        if kind == "xcd":
            A("s_and_b32 s48, s2, 7"); A("s_lshr_b32 s49, s2, 3"); A(f"s_lshr_b32 s{sh}, s49, 3")
            A(f"s_lshl2_add_u32 s{sh}, s48, s{sh}"); A(f"s_and_b32 s{sj}, s49, 7")
        else:
            A(f"s_lshr_b32 s{sh}, s2, 3"); A(f"s_and_b32 s{sj}, s2, 7")
    mf = lambda d, a, b, first: A(f"v_mfma_f32_16x16x32_bf16 v[{d}:{d+3}], v[{a}:{a+3}], v[{b}:{b+3}], {'0' if first else f'v[{d}:{d+3}]'}")

    L.append(HEADER.rstrip("\n"))
    L.append(f"; @launch grid=(256,1,1) block=(512,1,1) lds={LDS_BYTES}")
    L.append('.amdgcn_target "amdgcn-amd-amdhsa--gfx950"')
    L.append(".text"); L.append(f".globl {KNAME}"); L.append(".p2align 8"); L.append(f".type {KNAME},@function")
    LB(KNAME)
    A("s_cmp_ge_u32 s2, 256")
    A("s_cbranch_scc1 L_end")
    stamp(0)
    A("s_load_dwordx16 s[4:19], s[0:1], 0")
    A("s_load_dwordx8 s[20:27], s[0:1], 64")
    A("v_lshrrev_b32 v1, 6, v0")
    A("v_and_b32 v0, 63, v0")
    A("v_readfirstlane_b32 s3, v1")
    wgmap(amap, 28, 29)
    A("s_lshr_b32 s30, s29, 2")
    A("s_cmp_lt_u32 s3, 4")
    A("s_cbranch_scc1 L_HELP")
    RB = 84
    loads = []
    for ten in ("K", "V"):
        for t in range(16):
            for s in range(2):
                for i in range(3):
                    loads.append((ten, t, s, i))
    issued = [0]
    NTOT = len(loads) + 8
    def issue(idx, nowait=False):
        if idx >= WIN and not nowait: A(f"s_waitcnt vmcnt({WIN-1})")
        if idx >= len(loads):
            k = idx - len(loads)
            A("s_mov_b32 exec_hi, 0x0fffffff")
            A(f"s_add_u32 m0, s56, {960*k}")
            if k: A("s_add_u32 s54, s54, 7680")
            else: A("s_nop 0")
            A(f"buffer_load_dwordx4 v76, s[44:47], s54 offen {wo_flags} lds")
            A("s_mov_b32 exec_hi, -1")
            issued[0] += 1
            return
        ten, t, s, i = loads[idx]
        r = RB + 4 * (idx % R)
        if ten == "K":
            A(f"buffer_load_dwordx4 v[{r}:{r+3}], v1, s[36:39], s52 offen offset:{s*3072 + i*128} nt")
            if s == 1 and i == 2 and t < 15: A("s_add_u32 s52, s52, 6144")
        else:
            A(f"buffer_load_dwordx4 v[{r}:{r+3}], v2, s[40:43], s53 offen offset:{s*1536 + i*128} nt")
            if s == 1 and i == 2 and t < 15: A("s_add_u32 s53, s53, 6144")
        issued[0] += 1
    A("s_sub_u32 s55, s3, 4")
    A("v_lshrrev_b32 v4, 5, v0"); A("v_bfe_u32 v5, v0, 2, 2"); A("v_lshl_add_u32 v4, v4, 2, v5")
    A("v_mul_u32_u24 v1, 384, v4")
    A("v_and_b32 v5, 3, v0"); A("v_bfe_u32 v6, v0, 4, 1"); A("v_lshl_add_u32 v5, v6, 2, v5")
    A("v_lshlrev_b32 v3, 4, v5")
    A("v_add_u32 v1, v1, v3")
    A("s_lshl_b32 s48, s30, 5"); A("s_add_u32 s48, s48, s28"); A("s_lshl_b32 s48, s48, 2")
    A("s_and_b32 s49, s29, 3"); A("s_add_u32 s48, s48, s49"); A("s_lshl_b32 s48, s48, 2"); A("s_add_u32 s48, s48, s55")
    A("s_mul_i32 s52, s48, 98304")
    A("s_mov_b32 s53, s52")
    A("s_mov_b32 s38, 100663296"); A("s_mov_b32 s39, 0x20000")
    A("s_waitcnt lgkmcnt(0)")
    A("s_mov_b32 s36, s6"); A("s_mov_b32 s37, s7")
    for idx in range(WIN): issue(idx)
    A("s_branch L_STREAM")

    LB("L_HELP")
    A("v_lshrrev_b32 v3, 5, v0")
    A("v_and_b32 v4, 31, v0")
    A("v_mul_u32_u24 v3, 1280, v3")
    A("v_lshl_add_u32 v1, v4, 4, v3")
    A("v_lshl_add_u32 v2, v4, 3, v3")
    A("v_lshrrev_b32 v5, 3, v0")
    A("v_and_b32 v6, 7, v0")
    A("v_lshlrev_b32 v6, 4, v6")
    A("s_mul_i32 s51, s2, 6554"); A("s_lshr_b32 s51, s51, 16")
    A("s_mul_i32 s52, s51, 10"); A("s_sub_u32 s52, s2, s52")
    A("s_mul_i32 s55, s29, 160"); A("s_lshl_b32 s54, s52, 7")
    A("s_cmp_eq_u32 s3, 3")
    A("s_cselect_b32 s55, s54, s55")
    A("v_mul_u32_u24 v7, 12288, v5"); A("v_add_u32 v7, v7, v6")
    A(f"s_mul_i32 s53, s29, {80*12288}"); A("s_mul_i32 s54, s28, 384"); A("s_add_u32 s53, s53, s54")
    A("s_lshl_b32 s54, s3, 7"); A("s_add_u32 s53, s53, s54")
    A("s_mov_b32 s46, 2560"); A("s_mov_b32 s47, 0x20000")
    A(f"s_mov_b32 s38, {640*6144*2}"); A("s_mov_b32 s39, 0x20000")
    A("s_waitcnt lgkmcnt(0)")
    A("s_mov_b32 s44, s4"); A("s_mov_b32 s45, s5")
    A("buffer_load_dwordx4 v[8:11], v1, s[44:47], 0 offen")
    A("buffer_load_dwordx4 v[12:15], v1, s[44:47], 0 offen offset:512")
    A("buffer_load_dwordx2 v[16:17], v2, s[44:47], 0 offen offset:1024")
    A("buffer_load_dwordx2 v[18:19], v2, s[44:47], s55 offen")
    W = 96
    A("s_mov_b32 s36, s10"); A("s_mov_b32 s37, s11")
    A("s_cmp_eq_u32 s3, 3")
    A("s_cbranch_scc1 L_LN")
    for t in range(10):
        A(f"buffer_load_dwordx4 v[{W+4*t}:{W+4*t+3}], v7, s[36:39], s53 offen {w_flags}")
        if t < 9: A("s_add_u32 s53, s53, 98304")
    LB("L_LN")
    A(f"s_load_dword s31, s[26:27], {GEN_OFF}")
    srd(32, 26, WS_BYTES)
    amasks(88, 20)
    A("s_cmp_eq_u32 s3, 3")
    A("s_cselect_b32 s54, 1024, 0")
    A("v_lshrrev_b32 v21, 5, v0"); A("v_lshlrev_b32 v21, 9, v21"); A("v_and_b32 v22, 1, v0"); A("v_lshl_add_u32 v21, v22, 8, v21")
    A("v_bfe_u32 v22, v0, 1, 4"); A("v_lshl_add_u32 v21, v22, 2, v21"); A("v_add_u32 v21, s54, v21")
    A("v_lshl_add_u32 v22, v5, 6, s54")
    A("v_mov_b32 v23, 0"); A("v_lshlrev_b32 v24, 2, v0"); A("v_and_b32 v24, 63, v24")
    A(f"ds_write_b32 v24, v23 offset:{L_ML}")
    A("s_cbranch_scc0 L_LN_GO")
    A("s_waitcnt vmcnt(0)")
    LB("L_LN_GO")
    A("s_waitcnt vmcnt(10)")
    stamp(5)
    U = 24
    for k in range(10):
        A(f"v_lshlrev_b32 v{U+2*k}, 16, v{8+k}")
        A(f"v_and_b32 v{U+2*k+1}, 0xffff0000, v{8+k}")
    def half_reduce(v, t):
        for sh in (8, 4, 2, 1):
            A("s_nop 1")
            A(f"v_add_f32_dpp v{v}, v{v}, v{v} row_ror:{sh} {DPPF}")
        A(f"v_mov_b32 v{t}, v{v}"); A("s_nop 1")
        A(f"v_permlane16_swap_b32 v{t}, v{v}")
        A(f"v_add_f32 v{v}, v{v}, v{t}")
    pk = lambda r: f"v[{r}:{r+1}]"
    A(f"v_pk_add_f32 v[60:61], {pk(U)}, {pk(U+2)}")
    for k in range(2, 10): A(f"v_pk_add_f32 v[60:61], v[60:61], {pk(U+2*k)}")
    A("v_add_f32 v60, v60, v61")
    half_reduce(60, 61)
    A("v_mul_f32 v60, 0x3acccccd, v60")
    for k in range(10):
        A(f"v_pk_add_f32 {pk(U+2*k)}, {pk(U+2*k)}, v[60:61] op_sel_hi:[1,0] neg_lo:[0,1] neg_hi:[0,1]")
    A(f"v_pk_mul_f32 v[62:63], {pk(U)}, {pk(U)}")
    for k in range(1, 10): A(f"v_pk_fma_f32 v[62:63], {pk(U+2*k)}, {pk(U+2*k)}, v[62:63]")
    A("v_add_f32 v62, v62, v63")
    half_reduce(62, 63)
    A("v_mul_f32 v62, 0x3acccccd, v62")
    rne(60); rne(62)
    A("v_add_f32 v62, 0x3727c5ac, v62")
    rne(62)
    A("v_sqrt_f32 v62, v62")
    A("v_lshlrev_b32 v24, 16, v18"); A("v_and_b32 v25, 0xffff0000, v18")
    rne(62)
    A("v_rcp_f32 v62, v62")
    A("v_lshlrev_b32 v26, 16, v19"); A("v_and_b32 v27, 0xffff0000, v19")
    for k in range(4): A(f"v_sub_f32 v{24+k}, v{24+k}, v60")
    A("v_cvt_pk_bf16_f32 v18, v24, v25"); A("v_cvt_pk_bf16_f32 v19, v26, v27")
    A("v_lshlrev_b32 v24, 16, v18"); A("v_and_b32 v25, 0xffff0000, v18")
    A("v_lshlrev_b32 v26, 16, v19"); A("v_and_b32 v27, 0xffff0000, v19")
    for k in range(4): A(f"v_mul_f32 v{24+k}, v{24+k}, v62")
    for k in range(4):
        A(f"v_cvt_pk_bf16_f32 v{24+k}, v{24+k}, v{24+k}")
        A(f"ds_write_b32 v21, v{24+k} offset:{L_XN + 64*k}")
    X = 40
    for b in range(2):
        for q in range(3):
            A(f"ds_read_b128 v[{X+12*b+4*q}:{X+12*b+4*q+3}], v22 offset:{L_XN + 512*b + 16*q}")
    A("v_and_b32 v18, 7, v0"); A("v_lshlrev_b32 v18, 6, v18")
    A("v_bfe_u32 v19, v0, 4, 1"); A("v_lshl_add_u32 v18, v19, 5, v18")
    A("v_lshrrev_b32 v19, 5, v0"); A("v_lshl_add_u32 v18, v19, 4, v18")
    A("v_bfe_u32 v20, v0, 3, 1")
    A("v_lshlrev_b32 v19, 4, v0")
    A("s_waitcnt lgkmcnt(0)")
    A(f"s_add_u32 s31, s31, 0x{TAGC:08x}")
    A("s_cmp_eq_u32 s3, 3")
    A("s_cbranch_scc1 L_H_B1")
    DP, DQ, AA = 64, 68, 72
    def abuild(t):
        for b in range(2):
            for r in range(4):
                A(f"v_and_b32 v{AA+4*b+r}, v{X+12*b+t}, v{88+r}")
    for t in range(10):
        abuild(t)
        A(f"s_waitcnt vmcnt({9-t})")
        mf(DP, AA, W + 4*t, t == 0)
        mf(DQ, AA + 4, W + 4*t, t == 0)
    stamp(6)
    A("s_mul_i32 s53, s28, 3"); A("s_add_u32 s53, s53, s3"); A("s_lshl_b32 s53, s53, 13")
    A(f"s_add_u32 s53, s53, {QS_OFF}")
    A("s_lshl_b32 s54, s29, 9"); A("s_add_u32 s54, s54, s53")
    A("v_lshl_add_u32 v21, v20, 12, v18")
    A("s_lshl_b32 s60, s30, 12"); A("s_add_u32 s53, s53, s60")
    epilogue(DP, DQ, 80, "b")
    A("buffer_store_dwordx4 v[80:83], v21, s[32:35], s54 offen sc1")
    lds_ = [f"buffer_load_dwordx4 v[{24+4*k}:{27+4*k}], v19, s[32:35], s53 offen offset:{k*1024} sc1" for k in range(4)]
    poll("L_QPOLL", lds_, [25 + 2*k for k in range(8)], 8, sleep=12, pre=qsleep)
    for k in range(1, 4):
        A(f"v_add_f32 v24, v24, v{24+4*k}"); A(f"v_add_f32 v26, v26, v{26+4*k}")
    A("v_and_b32 v21, 31, v0"); A("v_lshlrev_b32 v21, 2, v21")
    A("v_lshrrev_b32 v22, 5, v0"); A("v_lshl_add_u32 v21, v22, 1, v21")
    A("v_permlane32_swap_b32 v24, v26")
    A("s_lshl_b32 s54, s3, 7")
    A("v_add_f32 v24, v24, v26")
    A("v_add_u32 v21, s54, v21")
    A("v_cvt_pk_bf16_f32 v24, v24, v24")
    A(f"ds_write_b16 v21, v24 offset:{L_Q}")
    A("s_waitcnt lgkmcnt(0)")
    LB("L_H_B1")
    stamp(1)
    A("s_barrier")
    wgmap(omap, 58, 59)
    A("s_cmp_eq_u32 s3, 0")
    A("s_cbranch_scc1 L_H0")
    A("s_cmp_eq_u32 s3, 2")
    A("s_cbranch_scc1 L_H2_PRE")
    A("s_cmp_eq_u32 s3, 1")
    A("s_cbranch_scc1 L_E1G")
    A("s_cmp_ge_u32 s2, 240")
    A("s_cbranch_scc1 L_E1G")
    D4 = [64, 68, 200, 204]
    srd(36, 16, 640 * 1536 * 2); srd(40, 18, 640 * 1536 * 2); srd(44, 20, 1536 * 640 * 2)
    A("v_mul_u32_u24 v7, 3072, v5"); A("v_add_u32 v7, v7, v6")
    A(f"s_mul_i32 s53, s52, {64*3072}"); A("s_lshl_b32 s54, s51, 7"); A("s_add_u32 s53, s53, s54")
    for t in range(8):
        A(f"s_waitcnt vmcnt({HW-2})")
        A(f"buffer_load_dwordx4 v[{W+4*t}:{W+4*t+3}], v7, s[36:39], s53 offen {w_flags}")
        A(f"buffer_load_dwordx4 v[{W+32+4*t}:{W+32+4*t+3}], v7, s[40:43], s53 offen {w_flags}")
        if t < 7: A("s_add_u32 s53, s53, 24576")
    A("v_mul_u32_u24 v7, 1280, v5"); A("v_add_u32 v7, v7, v6")
    A(f"s_mul_i32 s53, s51, {64*1280}"); A("s_lshl_b32 s54, s52, 7"); A("s_add_u32 s53, s53, s54")
    for t in range(8):
        A(f"s_waitcnt vmcnt({HW-1})")
        A(f"buffer_load_dwordx4 v[{W+64+4*t}:{W+64+4*t+3}], v7, s[44:47], s53 offen {w_flags}")
        if t < 7: A("s_add_u32 s53, s53, 10240")
    for t in range(8):
        abuild(t)
        A("s_nop 1")
        for mat in range(2):
            for b in range(2):
                mf(D4[2*mat+b], AA + 4*b, W + 32*mat + 4*t, t == 0)
    A(f"s_mul_i32 s53, s51, {10*2048}"); A(f"s_add_u32 s53, s53, {G1_OFF}")
    A("s_lshl_b32 s54, s52, 11"); A("s_add_u32 s54, s54, s53")
    A("v_lshl_add_u32 v21, v20, 9, v18")
    A("s_nop 3")
    epilogue(64, 68, 80, "b")
    epilogue(200, 204, 84, "b")
    A("buffer_store_dwordx4 v[80:83], v21, s[32:35], s54 offen sc1")
    A("buffer_store_dwordx4 v[84:87], v21, s[32:35], s54 offen offset:1024 sc1")
    quads = [W + 4*k for k in range(16)] + [24, 28, 32, 36]
    for k in range(1, 5):
        A(f"s_add_u32 s{60+k-1}, s53, {4096*k}")
    sof = ["s53", "s60", "s61", "s62", "s63"]
    lds_ = [f"buffer_load_dwordx4 v[{quads[k]}:{quads[k]+3}], v19, s[32:35], {sof[k>>2]} offen offset:{(k&3)*1024} sc1" for k in range(20)]
    poll("L_G1POLL", lds_, [q + 1 for q in quads] + [q + 3 for q in quads], 8, sleep=64, pre=100)
    for k in range(2, 20):
        base = quads[k & 1]
        A(f"v_add_f32 v{base}, v{base}, v{quads[k]}")
        A(f"v_add_f32 v{base+2}, v{base+2}, v{quads[k]+2}")
    g0, u0 = quads[0], quads[1]
    for e in range(2):
        rne(g0 + 2*e); rne(u0 + 2*e)
        A(f"v_mul_f32 v{g0+2*e}, v{g0+2*e}, v{u0+2*e}")
        A(f"v_cvt_pk_bf16_f32 v{8+e}, v{g0+2*e}, v{g0+2*e}")
    A("v_lshlrev_b32 v21, 3, v0")
    A(f"ds_write_b64 v21, v[8:9] offset:{L_HS}")
    A("v_lshlrev_b32 v21, 2, v5")
    for b in range(2):
        for t in range(8):
            A(f"ds_read_b32 v{X+12*b+t}, v21 offset:{L_HS + 256*b + 32*t}")
    A("s_waitcnt lgkmcnt(0)")
    for t in range(8):
        abuild(t)
        A("s_nop 1")
        for b in range(2):
            mf(D4[b], AA + 4*b, W + 64 + 4*t, t == 0)
    A("v_bfe_u32 v21, v0, 1, 2"); A("v_mul_u32_u24 v21, 6144, v21")
    A("v_and_b32 v22, 0x7f, v18"); A("v_lshl_add_u32 v21, v22, 1, v21"); A("v_lshl_add_u32 v21, v20, 4, v21")
    A(f"s_mul_i32 s53, s52, {4*6144}"); A("s_lshl_b32 s54, s51, 8"); A("s_add_u32 s53, s53, s54")
    A(f"s_add_u32 s53, s53, {G2_OFF}")
    epilogue(64, 68, 80, "e")
    A("buffer_store_dwordx4 v[80:83], v21, s[32:35], s53 offen sc1")
    LB("L_E1G")
    A("s_lshr_b32 s55, s3, 1")
    A("s_lshl_b32 s53, s58, 13"); A(f"s_add_u32 s53, s53, {E1_OFF}"); A("s_lshl_b32 s54, s55, 12"); A("s_add_u32 s53, s53, s54")
    A("s_mul_i32 s54, s55, 384")
    A("v_lshl_add_u32 v21, v0, 1, s54")
    stamp(2)
    A("s_barrier")
    stamp(3)
    lds_ = [f"buffer_load_dwordx4 v[{64+4*k}:{67+4*k}], v19, s[32:35], s53 offen offset:{k*1024} sc1" for k in range(4)]
    poll("L_E1POLL", lds_, [67 + 4*k for k in range(4)], 8)
    for i in range(3):
        A(f"v_add_f32 v{64+i}, v{64+i}, v{68+i}"); A(f"v_add_f32 v{72+i}, v{72+i}, v{76+i}")
    for i in range(3):
        A(f"v_add_f32 v{64+i}, v{64+i}, v{72+i}")
    for i in range(3):
        A(f"v_cvt_pk_bf16_f32 v{64+i}, v{64+i}, v{64+i}")
        A(f"ds_write_b16 v21, v{64+i} offset:{L_OBF + 128*i}")
    A("s_waitcnt lgkmcnt(0)")
    stamp(4)
    A("s_barrier")
    A("s_branch L_fin")
    LB("L_H2_PRE")
    A(f"s_cmp_lt_u32 s2, {red_base}")
    A("s_cbranch_scc1 L_H2_IDLE")
    A(f"s_cmp_ge_u32 s2, {red_base+40}")
    A("s_cbranch_scc1 L_H2_IDLE")
    A(f"s_sub_u32 s55, s2, {red_base}")
    A("v_bfe_u32 v21, v0, 4, 1"); A("v_mul_u32_u24 v21, 1280, v21")
    A("v_and_b32 v22, 15, v0"); A("v_lshl_add_u32 v21, v22, 1, v21")
    A("s_lshl_b32 s54, s55, 5"); A("v_add_u32 v92, s54, v21")
    A("global_load_ushort v93, v92, s[4:5]")
    A("s_mul_i32 s53, s55, 6144"); A(f"s_add_u32 s53, s53, {G2_OFF}"); A("s_add_u32 s60, s53, 4096")
    lds_ = [f"buffer_load_dwordx4 v[{W+4*k}:{W+4*k+3}], v19, s[32:35], {'s53' if k < 4 else 's60'} offen offset:{(k&3)*1024} sc1" for k in range(6)]
    poll("L_G2POLL", lds_, [W + 4*k + 1 for k in range(6)] + [W + 4*k + 3 for k in range(6)], 8, sleep=64, pre=480)
    def sum_pairs(n):
        for k in range(1, n):
            A(f"v_add_f32 v{W}, v{W}, v{W+4*k}"); A(f"v_add_f32 v{W+2}, v{W+2}, v{W+4*k+2}")
        A("s_nop 1")
        A(f"v_permlane16_swap_b32 v{W}, v{W+2}")
        A(f"v_add_f32 v{W}, v{W}, v{W+2}")
        A(f"v_mov_b32 v{W+2}, v{W}"); A("s_nop 1")
        A(f"v_permlane32_swap_b32 v{W+2}, v{W}")
        A(f"v_add_f32 v{W}, v{W}, v{W+2}")
        rne(W)
    sum_pairs(6)
    A(f"v_mul_f32 v21, 0x{LOG2E ^ 0x80000000:08x}, v{W}")
    A("v_exp_f32 v21, v21"); A("s_nop 0")
    A("v_add_f32 v21, 1.0, v21")
    A("v_rcp_f32 v21, v21"); A("s_nop 0")
    A(f"v_mul_f32 v94, v{W}, v21")
    rne(94)
    A("v_lshlrev_b32 v93, 16, v93")
    A("s_lshl_b32 s53, s55, 13"); A(f"s_add_u32 s53, s53, {E2_OFF}"); A("s_add_u32 s60, s53, 4096")
    stamp(2)
    A("s_barrier")
    A("s_barrier")
    stamp(4)
    lds_ = [f"buffer_load_dwordx4 v[{W+4*k}:{W+4*k+3}], v19, s[32:35], {'s53' if k < 4 else 's60'} offen offset:{(k&3)*1024} sc1" for k in range(8)]
    poll("L_E2POLL", lds_, [W + 4*k + 1 for k in range(8)] + [W + 4*k + 3 for k in range(8)], 8)
    sum_pairs(8)
    A(f"v_mul_f32 v{W}, v{W}, v94")
    rne(W)
    A(f"v_add_f32 v{W}, v{W}, v93")
    A(f"v_cvt_pk_bf16_f32 v{W}, v{W}, v{W}")
    A("s_mov_b32 exec_hi, 0")
    A(f"global_store_short v92, v{W}, s[22:23]")
    A("s_cmp_eq_u32 s55, 0")
    A("s_cbranch_scc0 L_fin")
    A("s_mov_b32 exec_lo, 1")
    A("v_mov_b32 v21, s31"); A(f"v_mov_b32 v22, {GEN_OFF}")
    A("buffer_store_dword v21, v22, s[32:35], 0 offen")
    A("s_branch L_fin")
    LB("L_H2_IDLE")
    A("s_barrier"); A("s_barrier")
    A("s_branch L_fin")
    LB("L_H0")
    A("v_and_b32 v21, 3, v0"); A("v_lshlrev_b32 v21, 4, v21")
    A("s_mov_b32 s50, 0")
    LB("L_MLPOLL")
    A("s_sleep 8")
    A(f"ds_read_b128 v[24:27], v21 offset:{L_ML}")
    A("s_add_u32 s50, s50, 1")
    A("s_waitcnt lgkmcnt(0)")
    A("v_cmp_eq_u32 vcc, 0, v26")
    A("s_cmp_gt_u32 s50, 0x40000")
    A("s_cbranch_scc1 L_MLPOLL_x")
    A("s_cbranch_vccnz L_MLPOLL")
    LB("L_MLPOLL_x")
    def quad(op, d, s):
        A(f"{op}_dpp v{d}, v{s}, v{s} quad_perm:[1,0,3,2] {DPPF}"); A("s_nop 1")
        A(f"{op}_dpp v{d}, v{d}, v{d} quad_perm:[2,3,0,1] {DPPF}")
    quad("v_max_f32", 28, 24)
    A("v_sub_f32 v24, v24, v28"); A(f"v_mul_f32 v24, 0x{LOG2E:08x}, v24"); A("v_exp_f32 v24, v24"); A("s_nop 0")
    A("v_mul_f32 v25, v24, v25"); A("s_nop 1")
    quad("v_add_f32", 29, 25)
    A("v_log_f32 v32, v29"); A("v_rcp_f32 v29, v29")
    A(f"v_fmac_f32 v32, 0x{LOG2E:08x}, v28")
    A("v_mul_f32 v24, v24, v29")
    A("v_mov_b32 v33, s31"); A("v_mov_b32 v34, v32"); A("v_mov_b32 v35, s31")
    A("s_lshl_b32 s53, s28, 10"); A(f"s_add_u32 s53, s53, {LX_OFF}")
    A("s_lshl_b32 s54, s29, 7"); A("s_add_u32 s54, s54, s53")
    A("s_lshl_b32 s60, s30, 9"); A("s_add_u32 s53, s53, s60")
    A("s_mov_b64 exec, 0xff")
    A("buffer_store_dwordx4 v[32:35], v19, s[32:35], s54 offen sc1")
    A("s_mov_b64 exec, -1")
    A("v_lshlrev_b32 v21, 3, v21")
    poll("L_LXPOLL", ["buffer_load_dwordx2 v[36:37], v21, s[32:35], s53 offen sc1"], [37], 8, sleep=32, pre=64)
    quad("v_max_f32", 28, 36)
    A("v_sub_f32 v36, v36, v28"); A("v_sub_f32 v32, v32, v28")
    A("v_exp_f32 v36, v36"); A("v_exp_f32 v32, v32"); A("s_nop 1")
    quad("v_add_f32", 29, 36)
    A("v_rcp_f32 v29, v29")
    A("v_mul_f32 v24, v24, v32"); A("v_mul_f32 v24, v24, v29"); A("s_nop 1")
    for s in range(4):
        A(f"v_mov_b32_dpp v{28+s}, v24 quad_perm:[{s},{s},{s},{s}] {DPPF}")
    A("v_lshlrev_b32 v21, 2, v0")
    A("s_lshl_b32 s54, s28, 13"); A(f"s_add_u32 s54, s54, {E1_OFF}"); A("s_lshl_b32 s53, s29, 10"); A("s_add_u32 s54, s54, s53")
    A("v_mov_b32 v35, s31")
    A("s_mov_b32 s55, 4")
    stamp(2)
    A("s_barrier")
    stamp(3)
    po = L_PART // 256
    assert L_PART % 256 == 0
    for m in range(12):
        A(f"ds_read2st64_b32 v[{40+2*m}:{41+2*m}], v21 offset0:{po+2*m} offset1:{po+2*m+1}")
    for e in range(24):
        k, i = divmod(e, 3)
        if e % 6 == 0: A(f"s_waitcnt lgkmcnt({9 - 3*(e//6)})")
        if k == 0: A(f"v_mul_f32 v{32+i}, v28, v{40+e}")
        else: A(f"v_fmac_f32 v{32+i}, v{28 + k//2}, v{40+e}")
    A("buffer_store_dwordx4 v[32:35], v19, s[32:35], s54 offen sc1")
    A("s_branch L_WO_PRE")

    LB("L_STREAM")
    A(f"s_load_dword s31, s[26:27], {GEN_OFF}")
    for idx in range(WIN, 12): issue(idx)
    srd(40, 8, 100663296); srd(44, 12, 6144 * 640 * 2); srd(32, 26, WS_BYTES)
    wgmap(omap, 58, 59)
    A("v_bfe_u32 v4, v0, 3, 1"); A("v_lshrrev_b32 v5, 4, v0"); A("v_lshl_add_u32 v4, v4, 3, v5")
    A("v_mul_u32_u24 v2, 384, v4"); A("v_and_b32 v5, 7, v0"); A("v_lshl_add_u32 v2, v5, 4, v2")
    A("v_mul_u32_u24 v76, 6554, v0"); A("v_lshrrev_b32 v76, 16, v76")
    A("v_mul_u32_u24 v5, 10, v76"); A("v_sub_u32 v5, v0, v5")
    A("v_mul_u32_u24 v76, 1280, v76"); A("v_lshl_add_u32 v76, v5, 4, v76")
    A("s_mul_i32 s54, s58, 192"); A("s_mul_i32 s48, s55, 48"); A("s_add_u32 s54, s54, s48"); A("s_mul_i32 s54, s54, 1280")
    A("s_mul_i32 s48, s59, 160"); A("s_add_u32 s54, s54, s48")
    A(f"s_mul_i32 s56, s55, 7680"); A(f"s_add_u32 s56, s56, {L_WO}")
    A("v_lshrrev_b32 v5, 5, v0"); A("v_mul_u32_u24 v77, 768, v5"); A("v_and_b32 v5, 7, v0"); A("v_lshl_add_u32 v77, v5, 5, v77")
    A("v_bfe_u32 v5, v0, 4, 1"); A("v_lshl_add_u32 v77, v5, 4, v77")
    A("s_mul_i32 s48, s55, 1536"); A("v_add_u32 v77, s48, v77")
    amasks(4, 78)
    BQ = 28
    for r in range(24): A(f"v_mov_b32 v{BQ+r}, 0")
    A("v_mov_b32 v79, 0xff800000")
    for idx in range(12, R): issue(idx)
    stamp(1)
    A("s_barrier")
    A("s_mov_b32 exec_lo, 0x000f000f"); A("s_mov_b32 exec_hi, 0x00f000f0")
    for i in range(3): A(f"ds_read_b128 v[{BQ+4*i}:{BQ+4*i+3}], v3 offset:{L_Q + 128*i}")
    A("s_mov_b32 exec_lo, 0x0f000f00"); A("s_mov_b32 exec_hi, 0xf000f000")
    for i in range(3): A(f"ds_read_b128 v[{BQ+12+4*i}:{BQ+12+4*i+3}], v3 offset:{L_Q + 128*i}")
    A("s_mov_b64 exec, -1")
    A("s_waitcnt lgkmcnt(0)")
    A(f"s_add_u32 s31, s31, 0x{TAGC:08x}")
    stamp(2)
    S = 52
    def extract(t):
        a = 8 + 4 * (t & 1)
        v = S + t
        A(f"v_mov_b32_dpp v{v}, v{a} quad_perm:[0,0,0,0] {DPPF}")
        for k in (1, 2, 3):
            A(f"v_add_f32_dpp v{v}, v{a+k}, v{v} quad_perm:[{k},{k},{k},{k}] {DPPF}")
        rne(v)
        A(f"v_mul_f32 v{v}, 0x{SCALE:08x}, v{v}")
        rne(v)
        A(f"v_max_f32 v79, v79, v{v}")
    n = len(loads)
    def pexp(t):
        v = S + t
        A(f"v_sub_f32 v{v}, v{v}, v79")
        A(f"v_mul_f32 v{v}, 0x{LOG2E:08x}, v{v}")
        A(f"v_exp_f32 v{v}, v{v}")
        A("s_nop 0")
        if t == 0: A(f"v_mov_b32 v80, v{v}")
        else: A(f"v_add_f32 v80, v80, v{v}")
        A(f"v_cvt_pk_bf16_f32 v{v}, v{v}, v{v}")
    def target(idx):
        fl = LK if idx < 96 else WIN
        return max(fl, R - max(0, idx - WIN + 1) // 2)
    for idx in range(n):
        ten, t, s, i = loads[idx]
        r = RB + 4 * (idx % R)
        if ten == "V" and s == 0 and i == 0:
            if t == 0:
                A("s_nop 7")
                extract(15)
                A("s_nop 1")
                A(f"v_max_f32_dpp v79, v79, v79 row_half_mirror {DPPF}"); A("s_nop 1")
                A(f"v_max_f32_dpp v79, v79, v79 row_mirror {DPPF}")
                xrow_reduce("v_max_f32", 79, 80)
                pexp(0)
                stamp(3)
                A("s_nop 0")
            p = S + t
            A(f"v_and_b32 v68, v{p}, v4"); A(f"v_and_b32 v69, v{p}, v5")
            A(f"v_and_b32_dpp v70, v{p}, v6 row_half_mirror {DPPF}"); A(f"v_and_b32_dpp v71, v{p}, v7 row_half_mirror {DPPF}")
            A(f"v_and_b32_dpp v72, v{p}, v4 row_half_mirror {DPPF}"); A(f"v_and_b32_dpp v73, v{p}, v5 row_half_mirror {DPPF}")
            A(f"v_and_b32 v74, v{p}, v6"); A(f"v_and_b32 v75, v{p}, v7")
        if issued[0] - idx - 1 < WIN: A(f"s_waitcnt vmcnt({issued[0] - idx - 1})")
        elif ten == "V" and s == 0 and i == 0: A("s_nop 0")
        if ten == "K":
            mf(8 + 4 * (t & 1), r, BQ + 12 * s + 4 * i, s == 0 and i == 0)
        else:
            mf(16 + 4 * i, 68 + 4 * s, r, t == 0 and s == 0)
        while issued[0] < NTOT and issued[0] - idx <= target(idx) and issued[0] - R <= idx:
            issue(issued[0])
        if ten == "K" and s == 1 and i == 2 and t > 0:
            A("s_nop 1")
            extract(t - 1)
        vi = idx - 96
        if 0 <= vi < 15:
            pexp(vi + 1)
        if vi == 15:
            A(f"v_add_f32_dpp v80, v80, v80 row_half_mirror {DPPF}"); A("s_nop 1")
            A(f"v_add_f32_dpp v80, v80, v80 row_mirror {DPPF}")
            xrow_reduce("v_add_f32", 80, 81)
            A("v_mov_b32 v8, v79"); A("v_mov_b32 v9, v80"); A("v_mov_b32 v10, 1"); A("v_mov_b32 v11, 1")
            A("s_lshl_b32 s48, s55, 4"); A("v_mov_b32 v81, s48")
            A(f"ds_write_b128 v81, v[8:11] offset:{L_ML}")
    A("s_mov_b32 exec_lo, 0x00ff00ff"); A("s_mov_b32 exec_hi, 0xff00ff00")
    A("s_nop 5")
    for i in range(3):
        A(f"ds_write_b128 v77, v[{16+4*i}:{19+4*i}] offset:{L_PART + 256*i}")
    A("s_mov_b64 exec, -1")
    while issued[0] < NTOT: issue(issued[0], nowait=True)
    A("s_waitcnt lgkmcnt(0)")
    stamp(4)
    A("s_barrier")
    A("s_waitcnt vmcnt(0)")
    LB("L_WO_PRE")
    A("v_bfe_u32 v1, v0, 1, 1"); A("v_mul_u32_u24 v1, 384, v1"); A("v_lshrrev_b32 v2, 4, v0"); A("v_lshl_add_u32 v1, v2, 4, v1")
    A("v_bfe_u32 v3, v0, 2, 2"); A("v_lshl_add_u32 v2, v2, 3, v3"); A("v_mul_u32_u24 v2, 160, v2")
    A("v_and_b32 v3, 3, v0"); A("v_lshl_add_u32 v2, v3, 3, v2")
    A("s_lshl_b32 s48, s55, 5"); A("v_add_u32 v2, s48, v2")
    A("v_lshlrev_b32 v3, 4, v0")
    A("s_mul_i32 s48, s59, 5"); A("s_add_u32 s48, s48, s55"); A("s_lshl_b32 s48, s48, 5"); A("s_add_u32 s48, s48, s58")
    A("s_lshl_b32 s48, s48, 8"); A(f"s_add_u32 s48, s48, {E2_OFF}")
    stamp(5)
    A("s_barrier")
    for s in range(6):
        A(f"ds_read_b128 v[{96+8*s}:{99+8*s}], v1 offset:{L_OBF + 64*s}")
        A(f"ds_read_b64_tr_b16 v[{100+8*s}:{101+8*s}], v2 offset:{L_WO + 5120*s}")
        A(f"ds_read_b64_tr_b16 v[{102+8*s}:{103+8*s}], v2 offset:{L_WO + 5120*s + 640}")
    for s in range(6):
        A(f"s_waitcnt lgkmcnt({min(15, 3*(5-s))})")
        mf(8, 96 + 8*s, 100 + 8*s, s == 0)
    A("s_mov_b32 exec_lo, 0xffff"); A("s_mov_b32 exec_hi, 0")
    A("s_nop 5")
    A("v_mov_b32 v9, s31"); A("v_mov_b32 v11, s31")
    A("buffer_store_dwordx4 v[8:11], v3, s[32:35], s48 offen sc1")
    LB("L_fin")
    if stamps:
        stamp(7)
        A("s_mov_b64 exec, 1")
        A("s_waitcnt lgkmcnt(0)")
        A("s_lshl_b32 s48, s2, 3"); A("s_add_u32 s48, s48, s3"); A("s_lshl_b32 s48, s48, 6"); A(f"s_add_u32 s48, s48, {STAMP_OFF}")
        A("v_mov_b32 v1, 0")
        for q in range(4):
            for k in range(4): A(f"v_mov_b32 v{4+k}, s{64+4*q+k}")
            A(f"buffer_store_dwordx4 v[4:7], v1, s[32:35], s48 offen offset:{16*q}")
            A("s_nop 1")
    LB("L_end")
    A("s_endpgm")
    L.append('.section .rodata,"a"'); L.append(".p2align 6"); L.append(f".amdhsa_kernel {KNAME}")
    for d in ["next_free_vgpr 256", "next_free_sgpr 96", "accum_offset 256", "group_segment_fixed_size 0", "kernarg_size 96",
              "user_sgpr_count 2", "user_sgpr_kernarg_segment_ptr 1", "system_sgpr_workgroup_id_x 1", "float_denorm_mode_32 3"]:
        L.append("  .amdhsa_" + d)
    L.append(".end_amdhsa_kernel")
    return "\n".join(L) + "\n"

if __name__ == "__main__":
    ap = argparse.ArgumentParser()
    ap.add_argument("-o", default="k.s")
    ap.add_argument("--R", type=int, default=42)
    ap.add_argument("--amap", default="lin")
    ap.add_argument("--omap", default="xcd")
    ap.add_argument("--stamps", action="store_true")
    ap.add_argument("--wo", default="nt")
    ap.add_argument("--w", default="nt")
    ap.add_argument("--WIN", type=int, default=5)
    ap.add_argument("--LK", type=int, default=10)
    ap.add_argument("--qsleep", type=int, default=40)
    ap.add_argument("--dbg", default="")
    a = ap.parse_args()
    open(a.o, "w").write(gen(R=a.R, amap=a.amap, omap=a.omap, stamps=a.stamps, wo_flags=a.wo, w_flags=a.w, WIN=a.WIN, LK=a.LK,
                             qsleep=a.qsleep, dbg=tuple(a.dbg.split(','))))
```

```python
import sys, argparse
KNAME = "recurrent_scan__gqa_block_cached__glu_gated_bilinear__decode_kernel"
HEADER = open("recurrent_scan__gqa_block_cached__glu_gated_bilinear__decode.s.ref").read().split("; Override launch")[0]

GEN_OFF = 0
LX_OFF = 4096
QS_OFF = LX_OFF + 256 * 128
E1_OFF = QS_OFF + 32 * 3 * 8192
E2_OFF = E1_OFF + 256 * 1024
G1_OFF = E2_OFF + 40 * 32 * 256
G2_OFF = G1_OFF + 24 * 10 * 2048
WS_USED = G2_OFF + 40 * 24 * 256
STAMP_OFF = 4 << 20
WS_BYTES = 402653184
L_XN = 0
L_Q = 2048
L_ML = 2432
L_OBF = 2560
L_HS = 3328
L_PART = 3840
L_WO = 9984
LDS_BYTES = L_WO + 30720
TAGC = 0x9E3779B1
LOG2E = 0x3FB8AA3B
SCALE = 0x3D93CD3A
DPPF = "row_mask:0xf bank_mask:0xf"

def gen(R=42, amap="lin", omap="xcd", stamps=False, wo_flags="nt", w_flags="nt", red_base=216, WIN=5, HW=4, LK=10,
        qsleep=40, dbg=(), kf='nt', vf='nt'):
    L = []
    A = lambda s: L.append("  " + s)
    LB = lambda s: L.append(s + ":")
    C = lambda s: L.append("  ; " + s)
    def stamp(k):
        if stamps:
            A(f"s_memrealtime s[{64+2*k}:{65+2*k}]")
    def srd(d, plo, size):
        A(f"s_mov_b32 s{d}, s{plo}"); A(f"s_mov_b32 s{d+1}, s{plo+1}")
        A(f"s_mov_b32 s{d+2}, {size}"); A(f"s_mov_b32 s{d+3}, 0x20000")
    def amasks(base, tmp):
        A(f"v_and_b32 v{tmp}, 1, v0")
        A(f"v_lshlrev_b32 v{tmp}, 4, v{tmp}")
        A("s_mov_b32 s48, 0xffff")
        A(f"v_lshlrev_b32_e64 v{tmp}, v{tmp}, s48")
        for r in range(4):
            A(f"s_mov_b32 s48, 0x{0x03030303 << (2*r):08x}")
            A("s_mov_b32 s49, s48")
            A(f"v_cndmask_b32_e64 v{base+r}, 0, v{tmp}, s[48:49]")
    def xrow_reduce(op, v, t):
        A(f"v_mov_b32 v{t}, v{v}"); A("s_nop 1")
        A(f"v_permlane16_swap_b32 v{t}, v{v}")
        A(f"{op} v{v}, v{v}, v{t}")
        A(f"v_mov_b32 v{t}, v{v}"); A("s_nop 1")
        A(f"v_permlane32_swap_b32 v{t}, v{v}")
        A(f"{op} v{v}, v{v}, v{t}")
    def rne(v):
        A(f"v_cvt_pk_bf16_f32 v{v}, v{v}, v{v}")
        A(f"v_and_b32 v{v}, 0xffff0000, v{v}")
    def epilogue(P, Q, G, kind):
        for a in (P, Q, P + 1, Q + 1):
            A(f"v_permlane32_swap_b32 v{a}, v{a+2}")
        A(f"v_mov_b32 v{G+1}, s31"); A(f"v_mov_b32 v{G+3}, s31")
        lo = lambda d, x: A(f"v_add_f32_dpp v{d}, v{x+2}, v{x} row_shl:8 {DPPF}")
        hi = lambda d, x: A(f"v_add_f32_dpp v{d}, v{x}, v{x+2} row_shr:8 {DPPF}")
        if kind == "b":
            lo(G, P); lo(G + 2, P + 1); hi(G, Q); hi(G + 2, Q + 1)
        else:
            lo(G, P); lo(G + 2, Q); hi(G, P + 1); hi(G + 2, Q + 1)
    def poll(label, loads, tagregs, tmp, sleep=0, pre=0):
        while pre > 0:
            A(f"s_sleep {min(pre, 127)}"); pre -= 127
        if label in dbg:
            for ld in loads: A(ld)
            A("s_waitcnt vmcnt(0)")
            return
        A("s_mov_b32 s50, 0")
        LB(label)
        for ld in loads: A(ld)
        A("s_add_u32 s50, s50, 1")
        A("s_waitcnt vmcnt(0)")
        A(f"v_xor_b32 v{tmp}, s31, v{tagregs[0]}")
        rest = list(tagregs[1:])
        while rest:
            if len(rest) >= 2:
                A(f"v_xor_b32 v{tmp+1}, s31, v{rest[0]}"); A(f"v_xor_b32 v{tmp+2}, s31, v{rest[1]}")
                A(f"v_or3_b32 v{tmp}, v{tmp}, v{tmp+1}, v{tmp+2}"); rest = rest[2:]
            else:
                A(f"v_xor_b32 v{tmp+1}, s31, v{rest[0]}"); A(f"v_or_b32 v{tmp}, v{tmp}, v{tmp+1}"); rest = rest[1:]
        A(f"v_cmp_ne_u32 vcc, 0, v{tmp}")
        A("s_cmp_gt_u32 s50, 0x40000")
        A(f"s_cbranch_scc1 {label}_x")
        if sleep:
            A(f"s_cbranch_vccz {label}_x")
            A(f"s_sleep {sleep}")
            A(f"s_branch {label}")
        else:
            A(f"s_cbranch_vccnz {label}")
        LB(label + "_x")
    def wgmap(kind, sh, sj):
        if kind == "xcd":
            A("s_and_b32 s48, s2, 7"); A("s_lshr_b32 s49, s2, 3"); A(f"s_lshr_b32 s{sh}, s49, 3")
            A(f"s_lshl2_add_u32 s{sh}, s48, s{sh}"); A(f"s_and_b32 s{sj}, s49, 7")
        else:
            A(f"s_lshr_b32 s{sh}, s2, 3"); A(f"s_and_b32 s{sj}, s2, 7")
    mf = lambda d, a, b, first: A(f"v_mfma_f32_16x16x32_bf16 v[{d}:{d+3}], v[{a}:{a+3}], v[{b}:{b+3}], {'0' if first else f'v[{d}:{d+3}]'}")

    L.append(HEADER.rstrip("\n"))
    L.append(f"; @launch grid=(256,1,1) block=(512,1,1) lds={LDS_BYTES}")
    L.append('.amdgcn_target "amdgcn-amd-amdhsa--gfx950"')
    L.append(".text"); L.append(f".globl {KNAME}"); L.append(".p2align 8"); L.append(f".type {KNAME},@function")
    LB(KNAME)
    A("s_cmp_ge_u32 s2, 256")
    A("s_cbranch_scc1 L_end")
    stamp(0)
    A("s_load_dwordx16 s[4:19], s[0:1], 0")
    A("s_load_dwordx8 s[20:27], s[0:1], 64")
    A("v_lshrrev_b32 v1, 6, v0")
    A("v_and_b32 v0, 63, v0")
    A("v_readfirstlane_b32 s3, v1")
    wgmap(amap, 28, 29)
    A("s_lshr_b32 s30, s29, 2")
    A("s_cmp_lt_u32 s3, 4")
    A("s_cbranch_scc1 L_HELP")
    RB = 84
    loads = []
    for ten in ("K", "V"):
        for t in range(16):
            for s in range(2):
                for i in range(3):
                    loads.append((ten, t, s, i))
    issued = [0]
    NTOT = len(loads) + 8
    def issue(idx, nowait=False):
        if idx >= WIN and not nowait: A(f"s_waitcnt vmcnt({WIN-1})")
        if idx >= len(loads):
            k = idx - len(loads)
            A("s_mov_b32 exec_hi, 0x0fffffff")
            A(f"s_add_u32 m0, s56, {960*k}")
            if k: A("s_add_u32 s54, s54, 7680")
            else: A("s_nop 0")
            A(f"buffer_load_dwordx4 v76, s[44:47], s54 offen {wo_flags} lds")
            A("s_mov_b32 exec_hi, -1")
            issued[0] += 1
            return
        ten, t, s, i = loads[idx]
        r = RB + 4 * (idx % R)
        if ten == "K":
            A(f"buffer_load_dwordx4 v[{r}:{r+3}], v1, s[36:39], s52 offen offset:{s*3072 + i*128} {kf}")
            if s == 1 and i == 2 and t < 15: A("s_add_u32 s52, s52, 6144")
        else:
            A(f"buffer_load_dwordx4 v[{r}:{r+3}], v2, s[40:43], s53 offen offset:{s*1536 + i*128} {vf}")
            if s == 1 and i == 2 and t < 15: A("s_add_u32 s53, s53, 6144")
        issued[0] += 1
    A("s_sub_u32 s55, s3, 4")
    A("v_lshrrev_b32 v4, 5, v0"); A("v_bfe_u32 v5, v0, 2, 2"); A("v_lshl_add_u32 v4, v4, 2, v5")
    A("v_mul_u32_u24 v1, 384, v4")
    A("v_and_b32 v5, 3, v0"); A("v_bfe_u32 v6, v0, 4, 1"); A("v_lshl_add_u32 v5, v6, 2, v5")
    A("v_lshlrev_b32 v3, 4, v5")
    A("v_add_u32 v1, v1, v3")
    A("s_lshl_b32 s48, s30, 5"); A("s_add_u32 s48, s48, s28"); A("s_lshl_b32 s48, s48, 2")
    A("s_and_b32 s49, s29, 3"); A("s_add_u32 s48, s48, s49"); A("s_lshl_b32 s48, s48, 2"); A("s_add_u32 s48, s48, s55")
    A("s_mul_i32 s52, s48, 98304")
    A("s_mov_b32 s53, s52")
    A("s_mov_b32 s38, 100663296"); A("s_mov_b32 s39, 0x20000")
    A("s_waitcnt lgkmcnt(0)")
    A("s_mov_b32 s36, s6"); A("s_mov_b32 s37, s7")
    for idx in range(WIN): issue(idx)
    A("s_branch L_STREAM")

    LB("L_HELP")
    A("v_lshrrev_b32 v3, 5, v0")
    A("v_and_b32 v4, 31, v0")
    A("v_mul_u32_u24 v3, 1280, v3")
    A("v_lshl_add_u32 v1, v4, 4, v3")
    A("v_lshl_add_u32 v2, v4, 3, v3")
    A("v_lshrrev_b32 v5, 3, v0")
    A("v_and_b32 v6, 7, v0")
    A("v_lshlrev_b32 v6, 4, v6")
    A("s_mul_i32 s51, s2, 6554"); A("s_lshr_b32 s51, s51, 16")
    A("s_mul_i32 s52, s51, 10"); A("s_sub_u32 s52, s2, s52")
    A("s_mul_i32 s55, s29, 160"); A("s_lshl_b32 s54, s52, 7")
    A("s_cmp_eq_u32 s3, 3")
    A("s_cselect_b32 s55, s54, s55")
    A("v_mul_u32_u24 v7, 12288, v5"); A("v_add_u32 v7, v7, v6")
    A(f"s_mul_i32 s53, s29, {80*12288}"); A("s_mul_i32 s54, s28, 384"); A("s_add_u32 s53, s53, s54")
    A("s_lshl_b32 s54, s3, 7"); A("s_add_u32 s53, s53, s54")
    A("s_mov_b32 s46, 2560"); A("s_mov_b32 s47, 0x20000")
    A(f"s_mov_b32 s38, {640*6144*2}"); A("s_mov_b32 s39, 0x20000")
    A("s_waitcnt lgkmcnt(0)")
    A("s_mov_b32 s44, s4"); A("s_mov_b32 s45, s5")
    A("buffer_load_dwordx4 v[8:11], v1, s[44:47], 0 offen")
    A("buffer_load_dwordx4 v[12:15], v1, s[44:47], 0 offen offset:512")
    A("buffer_load_dwordx2 v[16:17], v2, s[44:47], 0 offen offset:1024")
    A("buffer_load_dwordx2 v[18:19], v2, s[44:47], s55 offen")
    W = 96
    A("s_mov_b32 s36, s10"); A("s_mov_b32 s37, s11")
    A("s_cmp_eq_u32 s3, 3")
    A("s_cbranch_scc1 L_LN")
    for t in range(10):
        A(f"buffer_load_dwordx4 v[{W+4*t}:{W+4*t+3}], v7, s[36:39], s53 offen {w_flags}")
        if t < 9: A("s_add_u32 s53, s53, 98304")
    LB("L_LN")
    A(f"s_load_dword s31, s[26:27], {GEN_OFF}")
    srd(32, 26, WS_BYTES)
    amasks(88, 20)
    A("s_cmp_eq_u32 s3, 3")
    A("s_cselect_b32 s54, 1024, 0")
    A("v_lshrrev_b32 v21, 5, v0"); A("v_lshlrev_b32 v21, 9, v21"); A("v_and_b32 v22, 1, v0"); A("v_lshl_add_u32 v21, v22, 8, v21")
    A("v_bfe_u32 v22, v0, 1, 4"); A("v_lshl_add_u32 v21, v22, 2, v21"); A("v_add_u32 v21, s54, v21")
    A("v_lshl_add_u32 v22, v5, 6, s54")
    A("v_mov_b32 v23, 0"); A("v_lshlrev_b32 v24, 2, v0"); A("v_and_b32 v24, 63, v24")
    A(f"ds_write_b32 v24, v23 offset:{L_ML}")
    A("s_cbranch_scc0 L_LN_GO")
    A("s_waitcnt vmcnt(0)")
    LB("L_LN_GO")
    A("s_waitcnt vmcnt(10)")
    stamp(5)
    U = 24
    for k in range(10):
        A(f"v_lshlrev_b32 v{U+2*k}, 16, v{8+k}")
        A(f"v_and_b32 v{U+2*k+1}, 0xffff0000, v{8+k}")
    def half_reduce(v, t):
        for sh in (8, 4, 2, 1):
            A("s_nop 1")
            A(f"v_add_f32_dpp v{v}, v{v}, v{v} row_ror:{sh} {DPPF}")
        A(f"v_mov_b32 v{t}, v{v}"); A("s_nop 1")
        A(f"v_permlane16_swap_b32 v{t}, v{v}")
        A(f"v_add_f32 v{v}, v{v}, v{t}")
    pk = lambda r: f"v[{r}:{r+1}]"
    A(f"v_pk_add_f32 v[60:61], {pk(U)}, {pk(U+2)}")
    for k in range(2, 10): A(f"v_pk_add_f32 v[60:61], v[60:61], {pk(U+2*k)}")
    A("v_add_f32 v60, v60, v61")
    half_reduce(60, 61)
    A("v_mul_f32 v60, 0x3acccccd, v60")
    for k in range(10):
        A(f"v_pk_add_f32 {pk(U+2*k)}, {pk(U+2*k)}, v[60:61] op_sel_hi:[1,0] neg_lo:[0,1] neg_hi:[0,1]")
    A(f"v_pk_mul_f32 v[62:63], {pk(U)}, {pk(U)}")
    for k in range(1, 10): A(f"v_pk_fma_f32 v[62:63], {pk(U+2*k)}, {pk(U+2*k)}, v[62:63]")
    A("v_add_f32 v62, v62, v63")
    half_reduce(62, 63)
    A("v_mul_f32 v62, 0x3acccccd, v62")
    rne(60); rne(62)
    A("v_add_f32 v62, 0x3727c5ac, v62")
    rne(62)
    A("v_sqrt_f32 v62, v62")
    A("v_lshlrev_b32 v24, 16, v18"); A("v_and_b32 v25, 0xffff0000, v18")
    rne(62)
    A("v_rcp_f32 v62, v62")
    A("v_lshlrev_b32 v26, 16, v19"); A("v_and_b32 v27, 0xffff0000, v19")
    for k in range(4): A(f"v_sub_f32 v{24+k}, v{24+k}, v60")
    A("v_cvt_pk_bf16_f32 v18, v24, v25"); A("v_cvt_pk_bf16_f32 v19, v26, v27")
    A("v_lshlrev_b32 v24, 16, v18"); A("v_and_b32 v25, 0xffff0000, v18")
    A("v_lshlrev_b32 v26, 16, v19"); A("v_and_b32 v27, 0xffff0000, v19")
    for k in range(4): A(f"v_mul_f32 v{24+k}, v{24+k}, v62")
    for k in range(4):
        A(f"v_cvt_pk_bf16_f32 v{24+k}, v{24+k}, v{24+k}")
        A(f"ds_write_b32 v21, v{24+k} offset:{L_XN + 64*k}")
    X = 40
    for b in range(2):
        for q in range(3):
            A(f"ds_read_b128 v[{X+12*b+4*q}:{X+12*b+4*q+3}], v22 offset:{L_XN + 512*b + 16*q}")
    A("v_and_b32 v18, 7, v0"); A("v_lshlrev_b32 v18, 6, v18")
    A("v_bfe_u32 v19, v0, 4, 1"); A("v_lshl_add_u32 v18, v19, 5, v18")
    A("v_lshrrev_b32 v19, 5, v0"); A("v_lshl_add_u32 v18, v19, 4, v18")
    A("v_bfe_u32 v20, v0, 3, 1")
    A("v_lshlrev_b32 v19, 4, v0")
    A("s_waitcnt lgkmcnt(0)")
    A(f"s_add_u32 s31, s31, 0x{TAGC:08x}")
    A("s_cmp_eq_u32 s3, 3")
    A("s_cbranch_scc1 L_H_B1")
    DP, DQ, AA = 64, 68, 72
    def abuild(t):
        for b in range(2):
            for r in range(4):
                A(f"v_and_b32 v{AA+4*b+r}, v{X+12*b+t}, v{88+r}")
    for t in range(10):
        abuild(t)
        A(f"s_waitcnt vmcnt({9-t})")
        mf(DP, AA, W + 4*t, t == 0)
        mf(DQ, AA + 4, W + 4*t, t == 0)
    stamp(6)
    A("s_mul_i32 s53, s28, 3"); A("s_add_u32 s53, s53, s3"); A("s_lshl_b32 s53, s53, 13")
    A(f"s_add_u32 s53, s53, {QS_OFF}")
    A("s_lshl_b32 s54, s29, 9"); A("s_add_u32 s54, s54, s53")
    A("v_lshl_add_u32 v21, v20, 12, v18")
    A("s_lshl_b32 s60, s30, 12"); A("s_add_u32 s53, s53, s60")
    epilogue(DP, DQ, 80, "b")
    A("buffer_store_dwordx4 v[80:83], v21, s[32:35], s54 offen sc1")
    lds_ = [f"buffer_load_dwordx4 v[{24+4*k}:{27+4*k}], v19, s[32:35], s53 offen offset:{k*1024} sc1" for k in range(4)]
    poll("L_QPOLL", lds_, [25 + 2*k for k in range(8)], 8, sleep=12, pre=qsleep)
    for k in range(1, 4):
        A(f"v_add_f32 v24, v24, v{24+4*k}"); A(f"v_add_f32 v26, v26, v{26+4*k}")
    A("v_and_b32 v21, 31, v0"); A("v_lshlrev_b32 v21, 2, v21")
    A("v_lshrrev_b32 v22, 5, v0"); A("v_lshl_add_u32 v21, v22, 1, v21")
    A("v_permlane32_swap_b32 v24, v26")
    A("s_lshl_b32 s54, s3, 7")
    A("v_add_f32 v24, v24, v26")
    A("v_add_u32 v21, s54, v21")
    A("v_cvt_pk_bf16_f32 v24, v24, v24")
    A(f"ds_write_b16 v21, v24 offset:{L_Q}")
    A("s_waitcnt lgkmcnt(0)")
    LB("L_H_B1")
    stamp(1)
    A("s_barrier")
    wgmap(omap, 58, 59)
    A("s_cmp_eq_u32 s3, 0")
    A("s_cbranch_scc1 L_H0")
    A("s_cmp_eq_u32 s3, 2")
    A("s_cbranch_scc1 L_H2_PRE")
    A("s_cmp_eq_u32 s3, 1")
    A("s_cbranch_scc1 L_E1G")
    A("s_cmp_ge_u32 s2, 240")
    A("s_cbranch_scc1 L_E1G")
    D4 = [64, 68, 200, 204]
    srd(36, 16, 640 * 1536 * 2); srd(40, 18, 640 * 1536 * 2); srd(44, 20, 1536 * 640 * 2)
    A("v_mul_u32_u24 v7, 3072, v5"); A("v_add_u32 v7, v7, v6")
    A(f"s_mul_i32 s53, s52, {64*3072}"); A("s_lshl_b32 s54, s51, 7"); A("s_add_u32 s53, s53, s54")
    for t in range(8):
        A(f"s_waitcnt vmcnt({HW-2})")
        A(f"buffer_load_dwordx4 v[{W+4*t}:{W+4*t+3}], v7, s[36:39], s53 offen {w_flags}")
        A(f"buffer_load_dwordx4 v[{W+32+4*t}:{W+32+4*t+3}], v7, s[40:43], s53 offen {w_flags}")
        if t < 7: A("s_add_u32 s53, s53, 24576")
    A("v_mul_u32_u24 v7, 1280, v5"); A("v_add_u32 v7, v7, v6")
    A(f"s_mul_i32 s53, s51, {64*1280}"); A("s_lshl_b32 s54, s52, 7"); A("s_add_u32 s53, s53, s54")
    for t in range(8):
        A(f"s_waitcnt vmcnt({HW-1})")
        A(f"buffer_load_dwordx4 v[{W+64+4*t}:{W+64+4*t+3}], v7, s[44:47], s53 offen {w_flags}")
        if t < 7: A("s_add_u32 s53, s53, 10240")
    for t in range(8):
        abuild(t)
        A("s_nop 1")
        for mat in range(2):
            for b in range(2):
                mf(D4[2*mat+b], AA + 4*b, W + 32*mat + 4*t, t == 0)
    A(f"s_mul_i32 s53, s51, {10*2048}"); A(f"s_add_u32 s53, s53, {G1_OFF}")
    A("s_lshl_b32 s54, s52, 11"); A("s_add_u32 s54, s54, s53")
    A("v_lshl_add_u32 v21, v20, 9, v18")
    A("s_nop 3")
    epilogue(64, 68, 80, "b")
    epilogue(200, 204, 84, "b")
    A("buffer_store_dwordx4 v[80:83], v21, s[32:35], s54 offen sc1")
    A("buffer_store_dwordx4 v[84:87], v21, s[32:35], s54 offen offset:1024 sc1")
    quads = [W + 4*k for k in range(16)] + [24, 28, 32, 36]
    for k in range(1, 5):
        A(f"s_add_u32 s{60+k-1}, s53, {4096*k}")
    sof = ["s53", "s60", "s61", "s62", "s63"]
    lds_ = [f"buffer_load_dwordx4 v[{quads[k]}:{quads[k]+3}], v19, s[32:35], {sof[k>>2]} offen offset:{(k&3)*1024} sc1" for k in range(20)]
    poll("L_G1POLL", lds_, [q + 1 for q in quads] + [q + 3 for q in quads], 8, sleep=64, pre=100)
    for k in range(2, 20):
        base = quads[k & 1]
        A(f"v_add_f32 v{base}, v{base}, v{quads[k]}")
        A(f"v_add_f32 v{base+2}, v{base+2}, v{quads[k]+2}")
    g0, u0 = quads[0], quads[1]
    for e in range(2):
        rne(g0 + 2*e); rne(u0 + 2*e)
        A(f"v_mul_f32 v{g0+2*e}, v{g0+2*e}, v{u0+2*e}")
        A(f"v_cvt_pk_bf16_f32 v{8+e}, v{g0+2*e}, v{g0+2*e}")
    A("v_lshlrev_b32 v21, 3, v0")
    A(f"ds_write_b64 v21, v[8:9] offset:{L_HS}")
    A("v_lshlrev_b32 v21, 2, v5")
    for b in range(2):
        for t in range(8):
            A(f"ds_read_b32 v{X+12*b+t}, v21 offset:{L_HS + 256*b + 32*t}")
    A("s_waitcnt lgkmcnt(0)")
    for t in range(8):
        abuild(t)
        A("s_nop 1")
        for b in range(2):
            mf(D4[b], AA + 4*b, W + 64 + 4*t, t == 0)
    A("v_bfe_u32 v21, v0, 1, 2"); A("v_mul_u32_u24 v21, 6144, v21")
    A("v_and_b32 v22, 0x7f, v18"); A("v_lshl_add_u32 v21, v22, 1, v21"); A("v_lshl_add_u32 v21, v20, 4, v21")
    A(f"s_mul_i32 s53, s52, {4*6144}"); A("s_lshl_b32 s54, s51, 8"); A("s_add_u32 s53, s53, s54")
    A(f"s_add_u32 s53, s53, {G2_OFF}")
    epilogue(64, 68, 80, "e")
    A("buffer_store_dwordx4 v[80:83], v21, s[32:35], s53 offen sc1")
    LB("L_E1G")
    A("s_lshr_b32 s55, s3, 1")
    A("s_lshl_b32 s53, s58, 13"); A(f"s_add_u32 s53, s53, {E1_OFF}"); A("s_lshl_b32 s54, s55, 12"); A("s_add_u32 s53, s53, s54")
    A("s_mul_i32 s54, s55, 384")
    A("v_lshl_add_u32 v21, v0, 1, s54")
    stamp(2)
    A("s_barrier")
    stamp(3)
    lds_ = [f"buffer_load_dwordx4 v[{64+4*k}:{67+4*k}], v19, s[32:35], s53 offen offset:{k*1024} sc1" for k in range(4)]
    poll("L_E1POLL", lds_, [67 + 4*k for k in range(4)], 8)
    for i in range(3):
        A(f"v_add_f32 v{64+i}, v{64+i}, v{68+i}"); A(f"v_add_f32 v{72+i}, v{72+i}, v{76+i}")
    for i in range(3):
        A(f"v_add_f32 v{64+i}, v{64+i}, v{72+i}")
    for i in range(3):
        A(f"v_cvt_pk_bf16_f32 v{64+i}, v{64+i}, v{64+i}")
        A(f"ds_write_b16 v21, v{64+i} offset:{L_OBF + 128*i}")
    A("s_waitcnt lgkmcnt(0)")
    stamp(4)
    A("s_barrier")
    A("s_branch L_fin")
    LB("L_H2_PRE")
    A(f"s_cmp_lt_u32 s2, {red_base}")
    A("s_cbranch_scc1 L_H2_IDLE")
    A(f"s_cmp_ge_u32 s2, {red_base+40}")
    A("s_cbranch_scc1 L_H2_IDLE")
    A(f"s_sub_u32 s55, s2, {red_base}")
    A("v_bfe_u32 v21, v0, 4, 1"); A("v_mul_u32_u24 v21, 1280, v21")
    A("v_and_b32 v22, 15, v0"); A("v_lshl_add_u32 v21, v22, 1, v21")
    A("s_lshl_b32 s54, s55, 5"); A("v_add_u32 v92, s54, v21")
    A("global_load_ushort v93, v92, s[4:5]")
    A("s_mul_i32 s53, s55, 6144"); A(f"s_add_u32 s53, s53, {G2_OFF}"); A("s_add_u32 s60, s53, 4096")
    lds_ = [f"buffer_load_dwordx4 v[{W+4*k}:{W+4*k+3}], v19, s[32:35], {'s53' if k < 4 else 's60'} offen offset:{(k&3)*1024} sc1" for k in range(6)]
    poll("L_G2POLL", lds_, [W + 4*k + 1 for k in range(6)] + [W + 4*k + 3 for k in range(6)], 8, sleep=64, pre=480)
    def sum_pairs(n):
        for k in range(1, n):
            A(f"v_add_f32 v{W}, v{W}, v{W+4*k}"); A(f"v_add_f32 v{W+2}, v{W+2}, v{W+4*k+2}")
        A("s_nop 1")
        A(f"v_permlane16_swap_b32 v{W}, v{W+2}")
        A(f"v_add_f32 v{W}, v{W}, v{W+2}")
        A(f"v_mov_b32 v{W+2}, v{W}"); A("s_nop 1")
        A(f"v_permlane32_swap_b32 v{W+2}, v{W}")
        A(f"v_add_f32 v{W}, v{W}, v{W+2}")
        rne(W)
    sum_pairs(6)
    A(f"v_mul_f32 v21, 0x{LOG2E ^ 0x80000000:08x}, v{W}")
    A("v_exp_f32 v21, v21"); A("s_nop 0")
    A("v_add_f32 v21, 1.0, v21")
    A("v_rcp_f32 v21, v21"); A("s_nop 0")
    A(f"v_mul_f32 v94, v{W}, v21")
    rne(94)
    A("v_lshlrev_b32 v93, 16, v93")
    A("s_lshl_b32 s53, s55, 13"); A(f"s_add_u32 s53, s53, {E2_OFF}"); A("s_add_u32 s60, s53, 4096")
    stamp(2)
    A("s_barrier")
    A("s_barrier")
    stamp(4)
    lds_ = [f"buffer_load_dwordx4 v[{W+4*k}:{W+4*k+3}], v19, s[32:35], {'s53' if k < 4 else 's60'} offen offset:{(k&3)*1024} sc1" for k in range(8)]
    poll("L_E2POLL", lds_, [W + 4*k + 1 for k in range(8)] + [W + 4*k + 3 for k in range(8)], 8)
    sum_pairs(8)
    A(f"v_mul_f32 v{W}, v{W}, v94")
    rne(W)
    A(f"v_add_f32 v{W}, v{W}, v93")
    A(f"v_cvt_pk_bf16_f32 v{W}, v{W}, v{W}")
    A("s_mov_b32 exec_hi, 0")
    A(f"global_store_short v92, v{W}, s[22:23]")
    A("s_cmp_eq_u32 s55, 0")
    A("s_cbranch_scc0 L_fin")
    A("s_mov_b32 exec_lo, 1")
    A("v_mov_b32 v21, s31"); A(f"v_mov_b32 v22, {GEN_OFF}")
    A("buffer_store_dword v21, v22, s[32:35], 0 offen")
    A("s_branch L_fin")
    LB("L_H2_IDLE")
    A("s_barrier"); A("s_barrier")
    A("s_branch L_fin")
    LB("L_H0")
    A("v_and_b32 v21, 3, v0"); A("v_lshlrev_b32 v21, 4, v21")
    A("s_mov_b32 s50, 0")
    LB("L_MLPOLL")
    A("s_sleep 8")
    A(f"ds_read_b128 v[24:27], v21 offset:{L_ML}")
    A("s_add_u32 s50, s50, 1")
    A("s_waitcnt lgkmcnt(0)")
    A("v_cmp_eq_u32 vcc, 0, v26")
    A("s_cmp_gt_u32 s50, 0x40000")
    A("s_cbranch_scc1 L_MLPOLL_x")
    A("s_cbranch_vccnz L_MLPOLL")
    LB("L_MLPOLL_x")
    def quad(op, d, s):
        A(f"{op}_dpp v{d}, v{s}, v{s} quad_perm:[1,0,3,2] {DPPF}"); A("s_nop 1")
        A(f"{op}_dpp v{d}, v{d}, v{d} quad_perm:[2,3,0,1] {DPPF}")
    quad("v_max_f32", 28, 24)
    A("v_sub_f32 v24, v24, v28"); A(f"v_mul_f32 v24, 0x{LOG2E:08x}, v24"); A("v_exp_f32 v24, v24"); A("s_nop 0")
    A("v_mul_f32 v25, v24, v25"); A("s_nop 1")
    quad("v_add_f32", 29, 25)
    A("v_log_f32 v32, v29"); A("v_rcp_f32 v29, v29")
    A(f"v_fmac_f32 v32, 0x{LOG2E:08x}, v28")
    A("v_mul_f32 v24, v24, v29")
    A("v_mov_b32 v33, s31"); A("v_mov_b32 v34, v32"); A("v_mov_b32 v35, s31")
    A("s_lshl_b32 s53, s28, 10"); A(f"s_add_u32 s53, s53, {LX_OFF}")
    A("s_lshl_b32 s54, s29, 7"); A("s_add_u32 s54, s54, s53")
    A("s_lshl_b32 s60, s30, 9"); A("s_add_u32 s53, s53, s60")
    A("s_mov_b64 exec, 0xff")
    A("buffer_store_dwordx4 v[32:35], v19, s[32:35], s54 offen sc1")
    A("s_mov_b64 exec, -1")
    A("v_lshlrev_b32 v21, 3, v21")
    poll("L_LXPOLL", ["buffer_load_dwordx2 v[36:37], v21, s[32:35], s53 offen sc1"], [37], 8, sleep=32, pre=64)
    quad("v_max_f32", 28, 36)
    A("v_sub_f32 v36, v36, v28"); A("v_sub_f32 v32, v32, v28")
    A("v_exp_f32 v36, v36"); A("v_exp_f32 v32, v32"); A("s_nop 1")
    quad("v_add_f32", 29, 36)
    A("v_rcp_f32 v29, v29")
    A("v_mul_f32 v24, v24, v32"); A("v_mul_f32 v24, v24, v29"); A("s_nop 1")
    for s in range(4):
        A(f"v_mov_b32_dpp v{28+s}, v24 quad_perm:[{s},{s},{s},{s}] {DPPF}")
    A("v_lshlrev_b32 v21, 2, v0")
    A("s_lshl_b32 s54, s28, 13"); A(f"s_add_u32 s54, s54, {E1_OFF}"); A("s_lshl_b32 s53, s29, 10"); A("s_add_u32 s54, s54, s53")
    A("v_mov_b32 v35, s31")
    A("s_mov_b32 s55, 4")
    stamp(2)
    A("s_barrier")
    stamp(3)
    po = L_PART // 256
    assert L_PART % 256 == 0
    for m in range(12):
        A(f"ds_read2st64_b32 v[{40+2*m}:{41+2*m}], v21 offset0:{po+2*m} offset1:{po+2*m+1}")
    for e in range(24):
        k, i = divmod(e, 3)
        if e % 6 == 0: A(f"s_waitcnt lgkmcnt({9 - 3*(e//6)})")
        if k == 0: A(f"v_mul_f32 v{32+i}, v28, v{40+e}")
        else: A(f"v_fmac_f32 v{32+i}, v{28 + k//2}, v{40+e}")
    A("buffer_store_dwordx4 v[32:35], v19, s[32:35], s54 offen sc1")
    A("s_branch L_WO_PRE")

    LB("L_STREAM")
    A(f"s_load_dword s31, s[26:27], {GEN_OFF}")
    for idx in range(WIN, 12): issue(idx)
    srd(40, 8, 100663296); srd(44, 12, 6144 * 640 * 2); srd(32, 26, WS_BYTES)
    wgmap(omap, 58, 59)
    A("v_bfe_u32 v4, v0, 3, 1"); A("v_lshrrev_b32 v5, 4, v0"); A("v_lshl_add_u32 v4, v4, 3, v5")
    A("v_mul_u32_u24 v2, 384, v4"); A("v_and_b32 v5, 7, v0"); A("v_lshl_add_u32 v2, v5, 4, v2")
    A("v_mul_u32_u24 v76, 6554, v0"); A("v_lshrrev_b32 v76, 16, v76")
    A("v_mul_u32_u24 v5, 10, v76"); A("v_sub_u32 v5, v0, v5")
    A("v_mul_u32_u24 v76, 1280, v76"); A("v_lshl_add_u32 v76, v5, 4, v76")
    A("s_mul_i32 s54, s58, 192"); A("s_mul_i32 s48, s55, 48"); A("s_add_u32 s54, s54, s48"); A("s_mul_i32 s54, s54, 1280")
    A("s_mul_i32 s48, s59, 160"); A("s_add_u32 s54, s54, s48")
    A(f"s_mul_i32 s56, s55, 7680"); A(f"s_add_u32 s56, s56, {L_WO}")
    A("v_lshrrev_b32 v5, 5, v0"); A("v_mul_u32_u24 v77, 768, v5"); A("v_and_b32 v5, 7, v0"); A("v_lshl_add_u32 v77, v5, 5, v77")
    A("v_bfe_u32 v5, v0, 4, 1"); A("v_lshl_add_u32 v77, v5, 4, v77")
    A("s_mul_i32 s48, s55, 1536"); A("v_add_u32 v77, s48, v77")
    amasks(4, 78)
    BQ = 28
    for r in range(24): A(f"v_mov_b32 v{BQ+r}, 0")
    A("v_mov_b32 v79, 0xff800000")
    for idx in range(12, R): issue(idx)
    stamp(1)
    A("s_barrier")
    A("s_mov_b32 exec_lo, 0x000f000f"); A("s_mov_b32 exec_hi, 0x00f000f0")
    for i in range(3): A(f"ds_read_b128 v[{BQ+4*i}:{BQ+4*i+3}], v3 offset:{L_Q + 128*i}")
    A("s_mov_b32 exec_lo, 0x0f000f00"); A("s_mov_b32 exec_hi, 0xf000f000")
    for i in range(3): A(f"ds_read_b128 v[{BQ+12+4*i}:{BQ+12+4*i+3}], v3 offset:{L_Q + 128*i}")
    A("s_mov_b64 exec, -1")
    A("s_waitcnt lgkmcnt(0)")
    A(f"s_add_u32 s31, s31, 0x{TAGC:08x}")
    stamp(2)
    S = 52
    def extract(t):
        a = 8 + 4 * (t & 1)
        v = S + t
        A(f"v_mov_b32_dpp v{v}, v{a} quad_perm:[0,0,0,0] {DPPF}")
        for k in (1, 2, 3):
            A(f"v_add_f32_dpp v{v}, v{a+k}, v{v} quad_perm:[{k},{k},{k},{k}] {DPPF}")
        rne(v)
        A(f"v_mul_f32 v{v}, 0x{SCALE:08x}, v{v}")
        rne(v)
        A(f"v_max_f32 v79, v79, v{v}")
    n = len(loads)
    def pexp(t):
        v = S + t
        A(f"v_sub_f32 v{v}, v{v}, v79")
        A(f"v_mul_f32 v{v}, 0x{LOG2E:08x}, v{v}")
        A(f"v_exp_f32 v{v}, v{v}")
        A("s_nop 0")
        if t == 0: A(f"v_mov_b32 v80, v{v}")
        else: A(f"v_add_f32 v80, v80, v{v}")
        A(f"v_cvt_pk_bf16_f32 v{v}, v{v}, v{v}")
    def target(idx):
        fl = LK if idx < 96 else WIN
        return max(fl, R - max(0, idx - WIN + 1) // 2)
    for idx in range(n):
        ten, t, s, i = loads[idx]
        r = RB + 4 * (idx % R)
        if ten == "V" and s == 0 and i == 0:
            if t == 0:
                A("s_nop 7")
                extract(15)
                A("s_nop 1")
                A(f"v_max_f32_dpp v79, v79, v79 row_half_mirror {DPPF}"); A("s_nop 1")
                A(f"v_max_f32_dpp v79, v79, v79 row_mirror {DPPF}")
                xrow_reduce("v_max_f32", 79, 80)
                pexp(0)
                stamp(3)
                A("s_nop 0")
            p = S + t
            A(f"v_and_b32 v68, v{p}, v4"); A(f"v_and_b32 v69, v{p}, v5")
            A(f"v_and_b32_dpp v70, v{p}, v6 row_half_mirror {DPPF}"); A(f"v_and_b32_dpp v71, v{p}, v7 row_half_mirror {DPPF}")
            A(f"v_and_b32_dpp v72, v{p}, v4 row_half_mirror {DPPF}"); A(f"v_and_b32_dpp v73, v{p}, v5 row_half_mirror {DPPF}")
            A(f"v_and_b32 v74, v{p}, v6"); A(f"v_and_b32 v75, v{p}, v7")
        if issued[0] - idx - 1 < WIN: A(f"s_waitcnt vmcnt({issued[0] - idx - 1})")
        elif ten == "V" and s == 0 and i == 0: A("s_nop 0")
        if ten == "K":
            mf(8 + 4 * (t & 1), r, BQ + 12 * s + 4 * i, s == 0 and i == 0)
        else:
            mf(16 + 4 * i, 68 + 4 * s, r, t == 0 and s == 0)
        while issued[0] < NTOT and issued[0] - idx <= target(idx) and issued[0] - R <= idx:
            issue(issued[0])
        if ten == "K" and s == 1 and i == 2 and t > 0:
            A("s_nop 1")
            extract(t - 1)
        vi = idx - 96
        if 0 <= vi < 15:
            pexp(vi + 1)
        if vi == 15:
            A(f"v_add_f32_dpp v80, v80, v80 row_half_mirror {DPPF}"); A("s_nop 1")
            A(f"v_add_f32_dpp v80, v80, v80 row_mirror {DPPF}")
            xrow_reduce("v_add_f32", 80, 81)
            A("v_mov_b32 v8, v79"); A("v_mov_b32 v9, v80"); A("v_mov_b32 v10, 1"); A("v_mov_b32 v11, 1")
            A("s_lshl_b32 s48, s55, 4"); A("v_mov_b32 v81, s48")
            A(f"ds_write_b128 v81, v[8:11] offset:{L_ML}")
    A("s_mov_b32 exec_lo, 0x00ff00ff"); A("s_mov_b32 exec_hi, 0xff00ff00")
    A("s_nop 5")
    for i in range(3):
        A(f"ds_write_b128 v77, v[{16+4*i}:{19+4*i}] offset:{L_PART + 256*i}")
    A("s_mov_b64 exec, -1")
    while issued[0] < NTOT: issue(issued[0], nowait=True)
    A("s_waitcnt lgkmcnt(0)")
    stamp(4)
    A("s_barrier")
    A("s_waitcnt vmcnt(0)")
    LB("L_WO_PRE")
    A("v_bfe_u32 v1, v0, 1, 1"); A("v_mul_u32_u24 v1, 384, v1"); A("v_lshrrev_b32 v2, 4, v0"); A("v_lshl_add_u32 v1, v2, 4, v1")
    A("v_bfe_u32 v3, v0, 2, 2"); A("v_lshl_add_u32 v2, v2, 3, v3"); A("v_mul_u32_u24 v2, 160, v2")
    A("v_and_b32 v3, 3, v0"); A("v_lshl_add_u32 v2, v3, 3, v2")
    A("s_lshl_b32 s48, s55, 5"); A("v_add_u32 v2, s48, v2")
    A("v_lshlrev_b32 v3, 4, v0")
    A("s_mul_i32 s48, s59, 5"); A("s_add_u32 s48, s48, s55"); A("s_lshl_b32 s48, s48, 5"); A("s_add_u32 s48, s48, s58")
    A("s_lshl_b32 s48, s48, 8"); A(f"s_add_u32 s48, s48, {E2_OFF}")
    stamp(5)
    A("s_barrier")
    for s in range(6):
        A(f"ds_read_b128 v[{96+8*s}:{99+8*s}], v1 offset:{L_OBF + 64*s}")
        A(f"ds_read_b64_tr_b16 v[{100+8*s}:{101+8*s}], v2 offset:{L_WO + 5120*s}")
        A(f"ds_read_b64_tr_b16 v[{102+8*s}:{103+8*s}], v2 offset:{L_WO + 5120*s + 640}")
    for s in range(6):
        A(f"s_waitcnt lgkmcnt({min(15, 3*(5-s))})")
        mf(8, 96 + 8*s, 100 + 8*s, s == 0)
    A("s_mov_b32 exec_lo, 0xffff"); A("s_mov_b32 exec_hi, 0")
    A("s_nop 5")
    A("v_mov_b32 v9, s31"); A("v_mov_b32 v11, s31")
    A("buffer_store_dwordx4 v[8:11], v3, s[32:35], s48 offen sc1")
    LB("L_fin")
    if stamps:
        stamp(7)
        A("s_mov_b64 exec, 1")
        A("s_waitcnt lgkmcnt(0)")
        A("s_lshl_b32 s48, s2, 3"); A("s_add_u32 s48, s48, s3"); A("s_lshl_b32 s48, s48, 6"); A(f"s_add_u32 s48, s48, {STAMP_OFF}")
        A("v_mov_b32 v1, 0")
        for q in range(4):
            for k in range(4): A(f"v_mov_b32 v{4+k}, s{64+4*q+k}")
            A(f"buffer_store_dwordx4 v[4:7], v1, s[32:35], s48 offen offset:{16*q}")
            A("s_nop 1")
    LB("L_end")
    A("s_endpgm")
    L.append('.section .rodata,"a"'); L.append(".p2align 6"); L.append(f".amdhsa_kernel {KNAME}")
    for d in ["next_free_vgpr 256", "next_free_sgpr 96", "accum_offset 256", "group_segment_fixed_size 0", "kernarg_size 96",
              "user_sgpr_count 2", "user_sgpr_kernarg_segment_ptr 1", "system_sgpr_workgroup_id_x 1", "float_denorm_mode_32 3"]:
        L.append("  .amdhsa_" + d)
    L.append(".end_amdhsa_kernel")
    return "\n".join(L) + "\n"

if __name__ == "__main__":
    ap = argparse.ArgumentParser()
    ap.add_argument("-o", default="k.s")
    ap.add_argument("--R", type=int, default=42)
    ap.add_argument("--amap", default="lin")
    ap.add_argument("--omap", default="xcd")
    ap.add_argument("--stamps", action="store_true")
    ap.add_argument("--wo", default="nt")
    ap.add_argument("--w", default="nt")
    ap.add_argument("--WIN", type=int, default=5)
    ap.add_argument("--LK", type=int, default=10)
    ap.add_argument("--qsleep", type=int, default=40)
    ap.add_argument("--dbg", default="")
    ap.add_argument("--kf", default="nt")
    ap.add_argument("--vf", default="nt")
    a = ap.parse_args()
    open(a.o, "w").write(gen(R=a.R, amap=a.amap, omap=a.omap, stamps=a.stamps, wo_flags=a.wo, w_flags=a.w, WIN=a.WIN, LK=a.LK,
                             qsleep=a.qsleep, dbg=tuple(a.dbg.split(',')), kf=a.kf.replace('+', ' '), vf=a.vf.replace('+', ' ')))
```

```python
import sys, argparse
KNAME = "recurrent_scan__gqa_block_cached__glu_gated_bilinear__decode_kernel"
HEADER = open("recurrent_scan__gqa_block_cached__glu_gated_bilinear__decode.s.ref").read().split("; Override launch")[0]

GEN_OFF = 0
LX_OFF = 4096
QS_OFF = LX_OFF + 256 * 128
E1_OFF = QS_OFF + 32 * 3 * 8192
E2_OFF = E1_OFF + 256 * 1024
G1_OFF = E2_OFF + 40 * 32 * 256
G2_OFF = G1_OFF + 24 * 10 * 2048
WS_USED = G2_OFF + 40 * 24 * 256
STAMP_OFF = 4 << 20
WS_BYTES = 402653184
L_XN = 0
L_Q = 2048
L_ML = 2432
L_OBF = 2560
L_HS = 3328
L_PART = 3840
L_WO = 9984
LDS_BYTES = L_WO + 30720
TAGC = 0x9E3779B1
LOG2E = 0x3FB8AA3B
SCALE = 0x3D93CD3A
DPPF = "row_mask:0xf bank_mask:0xf"

def gen(R=42, amap="xcd", omap="xcd1", qmap="xcd7", g1sh=1, g2sh=0, g1pre=120, lxpre=100, stamps=False, wo_flags="nt", w_flags="nt", red_base=216, WIN=5, HW=4, LK=10, g2pre=480,
        qsleep=40, dbg=(), kf='nt', vf='nt'):
    L = []
    A = lambda s: L.append("  " + s)
    LB = lambda s: L.append(s + ":")
    C = lambda s: L.append("  ; " + s)
    def stamp(k):
        if stamps:
            A(f"s_memrealtime s[{64+2*k}:{65+2*k}]")
    def srd(d, plo, size):
        A(f"s_mov_b32 s{d}, s{plo}"); A(f"s_mov_b32 s{d+1}, s{plo+1}")
        A(f"s_mov_b32 s{d+2}, {size}"); A(f"s_mov_b32 s{d+3}, 0x20000")
    def amasks(base, tmp):
        A(f"v_and_b32 v{tmp}, 1, v0")
        A(f"v_lshlrev_b32 v{tmp}, 4, v{tmp}")
        A("s_mov_b32 s48, 0xffff")
        A(f"v_lshlrev_b32_e64 v{tmp}, v{tmp}, s48")
        for r in range(4):
            A(f"s_mov_b32 s48, 0x{0x03030303 << (2*r):08x}")
            A("s_mov_b32 s49, s48")
            A(f"v_cndmask_b32_e64 v{base+r}, 0, v{tmp}, s[48:49]")
    def xrow_reduce(op, v, t):
        A(f"v_mov_b32 v{t}, v{v}"); A("s_nop 1")
        A(f"v_permlane16_swap_b32 v{t}, v{v}")
        A(f"{op} v{v}, v{v}, v{t}")
        A(f"v_mov_b32 v{t}, v{v}"); A("s_nop 1")
        A(f"v_permlane32_swap_b32 v{t}, v{v}")
        A(f"{op} v{v}, v{v}, v{t}")
    def rne(v):
        A(f"v_cvt_pk_bf16_f32 v{v}, v{v}, v{v}")
        A(f"v_and_b32 v{v}, 0xffff0000, v{v}")
    def epilogue(P, Q, G, kind):
        for a in (P, Q, P + 1, Q + 1):
            A(f"v_permlane32_swap_b32 v{a}, v{a+2}")
        A(f"v_mov_b32 v{G+1}, s31"); A(f"v_mov_b32 v{G+3}, s31")
        lo = lambda d, x: A(f"v_add_f32_dpp v{d}, v{x+2}, v{x} row_shl:8 {DPPF}")
        hi = lambda d, x: A(f"v_add_f32_dpp v{d}, v{x}, v{x+2} row_shr:8 {DPPF}")
        if kind == "b":
            lo(G, P); lo(G + 2, P + 1); hi(G, Q); hi(G + 2, Q + 1)
        else:
            lo(G, P); lo(G + 2, Q); hi(G, P + 1); hi(G + 2, Q + 1)
    def poll(label, loads, tagregs, tmp, sleep=0, pre=0):
        while pre > 0:
            A(f"s_sleep {min(pre, 127)}"); pre -= 127
        if label in dbg:
            for ld in loads: A(ld)
            A("s_waitcnt vmcnt(0)")
            return
        A("s_mov_b32 s50, 0")
        LB(label)
        for ld in loads: A(ld)
        A("s_add_u32 s50, s50, 1")
        A("s_waitcnt vmcnt(0)")
        A(f"v_xor_b32 v{tmp}, s31, v{tagregs[0]}")
        rest = list(tagregs[1:])
        while rest:
            if len(rest) >= 2:
                A(f"v_xor_b32 v{tmp+1}, s31, v{rest[0]}"); A(f"v_xor_b32 v{tmp+2}, s31, v{rest[1]}")
                A(f"v_or3_b32 v{tmp}, v{tmp}, v{tmp+1}, v{tmp+2}"); rest = rest[2:]
            else:
                A(f"v_xor_b32 v{tmp+1}, s31, v{rest[0]}"); A(f"v_or_b32 v{tmp}, v{tmp}, v{tmp+1}"); rest = rest[1:]
        A(f"v_cmp_ne_u32 vcc, 0, v{tmp}")
        A("s_cmp_gt_u32 s50, 0x40000")
        A(f"s_cbranch_scc1 {label}_x")
        if sleep:
            A(f"s_cbranch_vccz {label}_x")
            A(f"s_sleep {sleep}")
            A(f"s_branch {label}")
        else:
            A(f"s_cbranch_vccnz {label}")
        LB(label + "_x")
    def wgmap(kind, sh, sj):
        if kind.startswith("xcd"):
            k = int(kind[3:] or 0)
            if k:
                A(f"s_add_u32 s48, s2, {k}"); A("s_and_b32 s48, s48, 7")
            else:
                A("s_and_b32 s48, s2, 7")
            A("s_lshr_b32 s49, s2, 3"); A(f"s_lshr_b32 s{sh}, s49, 3")
            A(f"s_lshl2_add_u32 s{sh}, s48, s{sh}"); A(f"s_and_b32 s{sj}, s49, 7")
        else:
            A(f"s_lshr_b32 s{sh}, s2, 3"); A(f"s_and_b32 s{sj}, s2, 7")
    mf = lambda d, a, b, first: A(f"v_mfma_f32_16x16x32_bf16 v[{d}:{d+3}], v[{a}:{a+3}], v[{b}:{b+3}], {'0' if first else f'v[{d}:{d+3}]'}")

    L.append(HEADER.rstrip("\n"))
    L.append(f"; @launch grid=(256,1,1) block=(512,1,1) lds={LDS_BYTES}")
    L.append('.amdgcn_target "amdgcn-amd-amdhsa--gfx950"')
    L.append(".text"); L.append(f".globl {KNAME}"); L.append(".p2align 8"); L.append(f".type {KNAME},@function")
    LB(KNAME)
    A("s_cmp_ge_u32 s2, 256")
    A("s_cbranch_scc1 L_end")
    stamp(0)
    A("s_load_dwordx16 s[4:19], s[0:1], 0")
    A("s_load_dwordx8 s[20:27], s[0:1], 64")
    A("v_lshrrev_b32 v1, 6, v0")
    A("v_and_b32 v0, 63, v0")
    A("v_readfirstlane_b32 s3, v1")
    wgmap(amap, 28, 29)
    A("s_lshr_b32 s30, s29, 2")
    A("s_cmp_lt_u32 s3, 4")
    A("s_cbranch_scc1 L_HELP")
    RB = 84
    loads = []
    for ten in ("K", "V"):
        for t in range(16):
            for s in range(2):
                for i in range(3):
                    loads.append((ten, t, s, i))
    issued = [0]
    NTOT = len(loads) + 8
    def issue(idx, nowait=False):
        if idx >= WIN and not nowait: A(f"s_waitcnt vmcnt({WIN-1})")
        if idx >= len(loads):
            k = idx - len(loads)
            A("s_mov_b32 exec_hi, 0x0fffffff")
            A(f"s_add_u32 m0, s56, {960*k}")
            if k: A("s_add_u32 s54, s54, 7680")
            else: A("s_nop 0")
            if "nowo" not in dbg: A(f"buffer_load_dwordx4 v76, s[44:47], s54 offen {wo_flags} lds")
            else: A("buffer_load_dword v78, v76, s[44:47], 0 offen")
            A("s_mov_b32 exec_hi, -1")
            issued[0] += 1
            return
        ten, t, s, i = loads[idx]
        r = RB + 4 * (idx % R)
        if ten == "K":
            A(f"buffer_load_dwordx4 v[{r}:{r+3}], v1, s[36:39], s52 offen offset:{s*3072 + i*128} {kf}")
            if s == 1 and i == 2 and t < 15: A("s_add_u32 s52, s52, 6144")
        else:
            A(f"buffer_load_dwordx4 v[{r}:{r+3}], v2, s[40:43], s53 offen offset:{s*1536 + i*128} {vf}")
            if s == 1 and i == 2 and t < 15: A("s_add_u32 s53, s53, 6144")
        issued[0] += 1
    A("s_sub_u32 s55, s3, 4")
    A("v_lshrrev_b32 v4, 5, v0"); A("v_bfe_u32 v5, v0, 2, 2"); A("v_lshl_add_u32 v4, v4, 2, v5")
    A("v_mul_u32_u24 v1, 384, v4")
    A("v_and_b32 v5, 3, v0"); A("v_bfe_u32 v6, v0, 4, 1"); A("v_lshl_add_u32 v5, v6, 2, v5")
    A("v_lshlrev_b32 v3, 4, v5")
    A("v_add_u32 v1, v1, v3")
    A("s_lshl_b32 s48, s30, 5"); A("s_add_u32 s48, s48, s28"); A("s_lshl_b32 s48, s48, 2")
    A("s_and_b32 s49, s29, 3"); A("s_add_u32 s48, s48, s49"); A("s_lshl_b32 s48, s48, 2"); A("s_add_u32 s48, s48, s55")
    A("s_mul_i32 s52, s48, 98304")
    A("s_mov_b32 s53, s52")
    A("s_mov_b32 s38, 100663296"); A("s_mov_b32 s39, 0x20000")
    A("s_waitcnt lgkmcnt(0)")
    A("s_mov_b32 s36, s6"); A("s_mov_b32 s37, s7")
    for idx in range(WIN): issue(idx)
    A("s_branch L_STREAM")

    LB("L_HELP")
    A("v_lshrrev_b32 v3, 5, v0")
    A("v_and_b32 v4, 31, v0")
    A("v_mul_u32_u24 v3, 1280, v3")
    A("v_lshl_add_u32 v1, v4, 4, v3")
    A("v_lshl_add_u32 v2, v4, 3, v3")
    A("v_lshrrev_b32 v5, 3, v0")
    A("v_and_b32 v6, 7, v0")
    A("v_lshlrev_b32 v6, 4, v6")
    wgmap(qmap, 62, 63)
    A("s_lshr_b32 s49, s2, 3")
    A("s_sub_u32 s51, s49, 15"); A("s_cmp_ge_u32 s49, 15"); A("s_cselect_b32 s49, s51, s49")
    A("s_mul_i32 s57, s49, 13108"); A("s_lshr_b32 s57, s57, 16")
    A("s_mul_i32 s52, s57, 5"); A("s_sub_u32 s52, s49, s52")
    A("s_mul_i32 s55, s63, 160"); A("s_lshl_b32 s54, s52, 8")
    A("s_cmp_eq_u32 s3, 3")
    A("s_cselect_b32 s55, s54, s55")
    A("v_mul_u32_u24 v7, 12288, v5"); A("v_add_u32 v7, v7, v6")
    A(f"s_mul_i32 s53, s63, {80*12288}"); A("s_mul_i32 s54, s62, 384"); A("s_add_u32 s53, s53, s54")
    A("s_lshl_b32 s54, s3, 7"); A("s_add_u32 s53, s53, s54")
    A("s_mov_b32 s46, 2560"); A("s_mov_b32 s47, 0x20000")
    A(f"s_mov_b32 s38, {640*6144*2}"); A("s_mov_b32 s39, 0x20000")
    A("s_waitcnt lgkmcnt(0)")
    A("s_mov_b32 s44, s4"); A("s_mov_b32 s45, s5")
    A("buffer_load_dwordx4 v[8:11], v1, s[44:47], 0 offen")
    A("buffer_load_dwordx4 v[12:15], v1, s[44:47], 0 offen offset:512")
    A("buffer_load_dwordx2 v[16:17], v2, s[44:47], 0 offen offset:1024")
    A("buffer_load_dwordx2 v[18:19], v2, s[44:47], s55 offen")
    W = 96
    A("s_mov_b32 s36, s10"); A("s_mov_b32 s37, s11")
    A("s_cmp_eq_u32 s3, 3")
    A("s_cbranch_scc1 L_LN")
    for t in range(10):
        if "nowq" in dbg: break
        A(f"buffer_load_dwordx4 v[{W+4*t}:{W+4*t+3}], v7, s[36:39], s53 offen {w_flags}")
        if t < 9: A("s_add_u32 s53, s53, 98304")
    LB("L_LN")
    A(f"s_load_dword s31, s[26:27], {GEN_OFF}")
    srd(32, 26, WS_BYTES)
    amasks(88, 20)
    A("s_cmp_eq_u32 s3, 3")
    A("s_cselect_b32 s54, 1024, 0")
    A("v_lshrrev_b32 v21, 5, v0"); A("v_lshlrev_b32 v21, 9, v21"); A("v_and_b32 v22, 1, v0"); A("v_lshl_add_u32 v21, v22, 8, v21")
    A("v_bfe_u32 v22, v0, 1, 4"); A("v_lshl_add_u32 v21, v22, 2, v21"); A("v_add_u32 v21, s54, v21")
    A("v_lshl_add_u32 v22, v5, 6, s54")
    A("v_mov_b32 v23, 0"); A("v_lshlrev_b32 v24, 2, v0"); A("v_and_b32 v24, 63, v24")
    A(f"ds_write_b32 v24, v23 offset:{L_ML}")
    A("s_cbranch_scc0 L_LN_GO")
    A("s_waitcnt vmcnt(0)")
    LB("L_LN_GO")
    A("s_waitcnt vmcnt(10)" if "nowq" not in dbg else "s_waitcnt vmcnt(0)")
    stamp(5)
    U = 24
    for k in range(10):
        A(f"v_lshlrev_b32 v{U+2*k}, 16, v{8+k}")
        A(f"v_and_b32 v{U+2*k+1}, 0xffff0000, v{8+k}")
    def half_reduce(v, t):
        for sh in (8, 4, 2, 1):
            A("s_nop 1")
            A(f"v_add_f32_dpp v{v}, v{v}, v{v} row_ror:{sh} {DPPF}")
        A(f"v_mov_b32 v{t}, v{v}"); A("s_nop 1")
        A(f"v_permlane16_swap_b32 v{t}, v{v}")
        A(f"v_add_f32 v{v}, v{v}, v{t}")
    pk = lambda r: f"v[{r}:{r+1}]"
    A(f"v_pk_add_f32 v[60:61], {pk(U)}, {pk(U+2)}")
    for k in range(2, 10): A(f"v_pk_add_f32 v[60:61], v[60:61], {pk(U+2*k)}")
    A("v_add_f32 v60, v60, v61")
    half_reduce(60, 61)
    A("v_mul_f32 v60, 0x3acccccd, v60")
    for k in range(10):
        A(f"v_pk_add_f32 {pk(U+2*k)}, {pk(U+2*k)}, v[60:61] op_sel_hi:[1,0] neg_lo:[0,1] neg_hi:[0,1]")
    A(f"v_pk_mul_f32 v[62:63], {pk(U)}, {pk(U)}")
    for k in range(1, 10): A(f"v_pk_fma_f32 v[62:63], {pk(U+2*k)}, {pk(U+2*k)}, v[62:63]")
    A("v_add_f32 v62, v62, v63")
    half_reduce(62, 63)
    A("v_mul_f32 v62, 0x3acccccd, v62")
    rne(60); rne(62)
    A("v_add_f32 v62, 0x3727c5ac, v62")
    rne(62)
    A("v_sqrt_f32 v62, v62")
    A("v_lshlrev_b32 v56, 16, v18"); A("v_and_b32 v57, 0xffff0000, v18")
    rne(62)
    A("v_rcp_f32 v62, v62")
    A("v_lshlrev_b32 v58, 16, v19"); A("v_and_b32 v59, 0xffff0000, v19")
    for k in range(4): A(f"v_sub_f32 v{56+k}, v{56+k}, v60")
    A("v_cvt_pk_bf16_f32 v18, v56, v57"); A("v_cvt_pk_bf16_f32 v19, v58, v59")
    A("v_lshlrev_b32 v56, 16, v18"); A("v_and_b32 v57, 0xffff0000, v18")
    A("v_lshlrev_b32 v58, 16, v19"); A("v_and_b32 v59, 0xffff0000, v19")
    for k in range(4): A(f"v_mul_f32 v{56+k}, v{56+k}, v62")
    for k in range(4):
        A(f"v_cvt_pk_bf16_f32 v{56+k}, v{56+k}, v{56+k}")
        A(f"ds_write_b32 v21, v{56+k} offset:{L_XN + 64*k}")
    X = 24
    for q in range(4):
        for b in range(2):
            A(f"ds_read_b128 v[{X+16*b+4*q}:{X+16*b+4*q+3}], v22 offset:{L_XN + 512*b + 16*q}")
    A("v_and_b32 v18, 7, v0"); A("v_lshlrev_b32 v18, 6, v18")
    A("v_bfe_u32 v19, v0, 4, 1"); A("v_lshl_add_u32 v18, v19, 5, v18")
    A("v_lshrrev_b32 v19, 5, v0"); A("v_lshl_add_u32 v18, v19, 4, v18")
    A("v_bfe_u32 v20, v0, 3, 1")
    A("v_lshlrev_b32 v19, 4, v0")
    A("s_waitcnt lgkmcnt(0)")
    A(f"s_add_u32 s31, s31, 0x{TAGC:08x}")
    A("s_cmp_eq_u32 s3, 3")
    A("s_cbranch_scc1 L_H_B1")
    DP, DQ, AA = 64, 68, 72
    def abuild(t):
        for b in range(2):
            for r in range(4):
                A(f"v_and_b32 v{AA+4*b+r}, v{X+16*b+t}, v{88+r}")
    for t in range(10):
        abuild(t)
        A(f"s_waitcnt vmcnt({9-t})")
        mf(DP, AA, W + 4*t, t == 0)
        mf(DQ, AA + 4, W + 4*t, t == 0)
    stamp(6)
    if "noqx" in dbg: A("s_branch L_H_B1")
    A("s_mul_i32 s54, s62, 3"); A("s_add_u32 s54, s54, s3"); A("s_lshl_b32 s54, s54, 13")
    A("s_lshl_b32 s60, s63, 9"); A("s_add_u32 s54, s54, s60"); A(f"s_add_u32 s54, s54, {QS_OFF}")
    A("s_mul_i32 s53, s28, 3"); A("s_add_u32 s53, s53, s3"); A("s_lshl_b32 s53, s53, 13")
    A("s_lshl_b32 s60, s30, 12"); A("s_add_u32 s53, s53, s60"); A(f"s_add_u32 s53, s53, {QS_OFF}")
    A("v_lshl_add_u32 v21, v20, 12, v18")
    epilogue(DP, DQ, 80, "b")
    A("buffer_store_dwordx4 v[80:83], v21, s[32:35], s54 offen sc1")
    lds_ = [f"buffer_load_dwordx4 v[{24+4*k}:{27+4*k}], v19, s[32:35], s53 offen offset:{k*1024} sc1" for k in range(4)]
    poll("L_QPOLL", lds_, [25 + 2*k for k in range(8)], 8, sleep=12, pre=qsleep)
    for k in range(1, 4):
        A(f"v_add_f32 v24, v24, v{24+4*k}"); A(f"v_add_f32 v26, v26, v{26+4*k}")
    A("v_and_b32 v21, 31, v0"); A("v_lshlrev_b32 v21, 2, v21")
    A("v_lshrrev_b32 v22, 5, v0"); A("v_lshl_add_u32 v21, v22, 1, v21")
    A("v_permlane32_swap_b32 v24, v26")
    A("s_lshl_b32 s54, s3, 7")
    A("v_add_f32 v24, v24, v26")
    A("v_add_u32 v21, s54, v21")
    A("v_cvt_pk_bf16_f32 v24, v24, v24")
    A(f"ds_write_b16 v21, v24 offset:{L_Q}")
    A("s_waitcnt lgkmcnt(0)")
    LB("L_H_B1")
    stamp(1)
    A("s_barrier")
    wgmap(omap, 58, 59)
    A("s_cmp_eq_u32 s3, 0")
    A("s_cbranch_scc1 L_H0")
    A("s_cmp_eq_u32 s3, 2")
    A("s_cbranch_scc1 L_H2_PRE")
    A("s_cmp_eq_u32 s3, 1")
    A("s_cbranch_scc1 L_E1G")
    if "noglu" in dbg: A("s_branch L_E1G")
    A("s_cmp_ge_u32 s2, 240")
    A("s_cbranch_scc1 L_E1G")
    D4 = [64, 68, 224, 228]
    A("s_cmp_ge_u32 s2, 120")
    A("s_cbranch_scc1 L_G2")
    A(f"s_add_u32 s48, s2, {g1sh}"); A("s_and_b32 s48, s48, 7"); A("s_mul_i32 s51, s48, 3"); A("s_add_u32 s51, s51, s57")
    srd(36, 16, 640 * 1536 * 2); srd(40, 18, 640 * 1536 * 2)
    A("v_mul_u32_u24 v7, 3072, v5"); A("v_add_u32 v7, v7, v6")
    A(f"s_mul_i32 s53, s52, {128*3072}"); A("s_lshl_b32 s54, s51, 7"); A("s_add_u32 s53, s53, s54")
    LAG = HW // 2
    def g1c(t):
        abuild(t)
        A("s_nop 1")
        for mat in range(2):
            for b in range(2):
                mf(D4[2*mat+b], AA + 4*b, W + 8*t + 4*mat, t == 0)
    for t in range(16):
        if t >= LAG: A(f"s_waitcnt vmcnt({2*LAG-2})")
        A(f"buffer_load_dwordx4 v[{W+8*t}:{W+8*t+3}], v7, s[36:39], s53 offen {w_flags}")
        A(f"buffer_load_dwordx4 v[{W+8*t+4}:{W+8*t+7}], v7, s[40:43], s53 offen {w_flags}")
        if t < 15: A("s_add_u32 s53, s53, 24576")
        if t >= LAG: g1c(t - LAG)
    A("s_waitcnt vmcnt(0)")
    for t in range(16 - LAG, 16): g1c(t)
    A(f"s_mul_i32 s53, s51, {5*2048}"); A(f"s_add_u32 s53, s53, {G1_OFF}")
    A("s_lshl_b32 s54, s52, 11"); A("s_add_u32 s54, s54, s53")
    A("v_lshl_add_u32 v21, v20, 9, v18")
    A("s_nop 3")
    epilogue(D4[0], D4[1], 80, "b")
    epilogue(D4[2], D4[3], 84, "b")
    A("buffer_store_dwordx4 v[80:83], v21, s[32:35], s54 offen sc1")
    A("buffer_store_dwordx4 v[84:87], v21, s[32:35], s54 offen offset:1024 sc1")
    A("s_branch L_E1G")
    LB("L_G2")
    A(f"s_add_u32 s48, s2, {g2sh}"); A("s_and_b32 s48, s48, 7"); A("s_mul_i32 s56, s48, 3"); A("s_add_u32 s56, s56, s57")
    srd(44, 20, 1536 * 640 * 2)
    A("v_mul_u32_u24 v7, 1280, v5"); A("v_add_u32 v7, v7, v6")
    A(f"s_mul_i32 s53, s56, {64*1280}"); A("s_lshl_b32 s54, s52, 8"); A("s_add_u32 s53, s53, s54")
    for t in range(8):
        if t >= LAG: A(f"s_waitcnt vmcnt({2*LAG-2})")
        A(f"buffer_load_dwordx4 v[{W+8*t}:{W+8*t+3}], v7, s[44:47], s53 offen {w_flags}")
        A(f"buffer_load_dwordx4 v[{W+8*t+4}:{W+8*t+7}], v7, s[44:47], s53 offen offset:128 {w_flags}")
        if t < 7: A("s_add_u32 s53, s53, 10240")
    A(f"s_mul_i32 s53, s56, {5*2048}"); A(f"s_add_u32 s53, s53, {G1_OFF}")
    A("s_add_u32 s60, s53, 4096"); A("s_add_u32 s61, s53, 8192")
    quads = [W + 64 + 4*k for k in range(10)]
    sof = ["s53", "s60", "s61"]
    lds_ = [f"buffer_load_dwordx4 v[{quads[k]}:{quads[k]+3}], v19, s[32:35], {sof[k>>2]} offen offset:{(k&3)*1024} sc1" for k in range(10)]
    poll("L_G1POLL", lds_, [q + 1 for q in quads] + [q + 3 for q in quads], 8, sleep=100, pre=g1pre)
    for k in range(2, 10):
        base = quads[k & 1]
        A(f"v_add_f32 v{base}, v{base}, v{quads[k]}")
        A(f"v_add_f32 v{base+2}, v{base+2}, v{quads[k]+2}")
    g0, u0 = quads[0], quads[1]
    for e in range(2):
        rne(g0 + 2*e); rne(u0 + 2*e)
        A(f"v_mul_f32 v{g0+2*e}, v{g0+2*e}, v{u0+2*e}")
        A(f"v_cvt_pk_bf16_f32 v{8+e}, v{g0+2*e}, v{g0+2*e}")
    A("v_lshlrev_b32 v21, 3, v0")
    A(f"ds_write_b64 v21, v[8:9] offset:{L_HS}")
    A("v_lshlrev_b32 v21, 2, v5")
    for b in range(2):
        for t in range(8):
            A(f"ds_read_b32 v{X+16*b+t}, v21 offset:{L_HS + 256*b + 32*t}")
    A("s_waitcnt lgkmcnt(0)")
    for t in range(8):
        abuild(t)
        A("s_nop 1")
        for cg in range(2):
            for b in range(2):
                mf(D4[2*cg+b], AA + 4*b, W + 8*t + 4*cg, t == 0)
    A("v_bfe_u32 v21, v0, 1, 2"); A("v_mul_u32_u24 v21, 6144, v21")
    A("v_and_b32 v22, 0x7f, v18"); A("v_lshl_add_u32 v21, v22, 1, v21"); A("v_lshl_add_u32 v21, v20, 4, v21")
    A(f"s_mul_i32 s53, s52, {8*6144}"); A("s_lshl_b32 s54, s56, 8"); A("s_add_u32 s53, s53, s54")
    A(f"s_add_u32 s53, s53, {G2_OFF}"); A(f"s_add_u32 s54, s53, {4*6144}")
    epilogue(D4[0], D4[1], 80, "e")
    epilogue(D4[2], D4[3], 84, "e")
    A("buffer_store_dwordx4 v[80:83], v21, s[32:35], s53 offen sc1")
    A("buffer_store_dwordx4 v[84:87], v21, s[32:35], s54 offen sc1")
    LB("L_E1G")
    A("s_lshr_b32 s55, s3, 1")
    A("s_lshl_b32 s53, s58, 13"); A(f"s_add_u32 s53, s53, {E1_OFF}"); A("s_lshl_b32 s54, s55, 12"); A("s_add_u32 s53, s53, s54")
    A("s_mul_i32 s54, s55, 384")
    A("v_lshl_add_u32 v21, v0, 1, s54")
    stamp(2)
    A("s_barrier")
    stamp(3)
    lds_ = [f"buffer_load_dwordx4 v[{64+4*k}:{67+4*k}], v19, s[32:35], s53 offen offset:{k*1024} sc1" for k in range(4)]
    poll("L_E1POLL", lds_, [67 + 4*k for k in range(4)], 8)
    for i in range(3):
        A(f"v_add_f32 v{64+i}, v{64+i}, v{68+i}"); A(f"v_add_f32 v{72+i}, v{72+i}, v{76+i}")
    for i in range(3):
        A(f"v_add_f32 v{64+i}, v{64+i}, v{72+i}")
    for i in range(3):
        A(f"v_cvt_pk_bf16_f32 v{64+i}, v{64+i}, v{64+i}")
        A(f"ds_write_b16 v21, v{64+i} offset:{L_OBF + 128*i}")
    A("s_waitcnt lgkmcnt(0)")
    stamp(4)
    A("s_barrier")
    A("s_branch L_fin")
    LB("L_H2_PRE")
    A(f"s_cmp_lt_u32 s2, {red_base}")
    A("s_cbranch_scc1 L_H2_IDLE")
    A(f"s_cmp_ge_u32 s2, {red_base+40}")
    A("s_cbranch_scc1 L_H2_IDLE")
    A(f"s_sub_u32 s55, s2, {red_base}")
    A("v_bfe_u32 v21, v0, 4, 1"); A("v_mul_u32_u24 v21, 1280, v21")
    A("v_and_b32 v22, 15, v0"); A("v_lshl_add_u32 v21, v22, 1, v21")
    A("s_lshl_b32 s54, s55, 5"); A("v_add_u32 v92, s54, v21")
    A("global_load_ushort v93, v92, s[4:5]")
    A("s_mul_i32 s53, s55, 6144"); A(f"s_add_u32 s53, s53, {G2_OFF}"); A("s_add_u32 s60, s53, 4096")
    lds_ = [f"buffer_load_dwordx4 v[{W+4*k}:{W+4*k+3}], v19, s[32:35], {'s53' if k < 4 else 's60'} offen offset:{(k&3)*1024} sc1" for k in range(6)]
    poll("L_G2POLL", lds_, [W + 4*k + 1 for k in range(6)] + [W + 4*k + 3 for k in range(6)], 8, sleep=64, pre=g2pre)
    def sum_pairs(n):
        for k in range(1, n):
            A(f"v_add_f32 v{W}, v{W}, v{W+4*k}"); A(f"v_add_f32 v{W+2}, v{W+2}, v{W+4*k+2}")
        A("s_nop 1")
        A(f"v_permlane16_swap_b32 v{W}, v{W+2}")
        A(f"v_add_f32 v{W}, v{W}, v{W+2}")
        A(f"v_mov_b32 v{W+2}, v{W}"); A("s_nop 1")
        A(f"v_permlane32_swap_b32 v{W+2}, v{W}")
        A(f"v_add_f32 v{W}, v{W}, v{W+2}")
        rne(W)
    sum_pairs(6)
    A(f"v_mul_f32 v21, 0x{LOG2E ^ 0x80000000:08x}, v{W}")
    A("v_exp_f32 v21, v21"); A("s_nop 0")
    A("v_add_f32 v21, 1.0, v21")
    A("v_rcp_f32 v21, v21"); A("s_nop 0")
    A(f"v_mul_f32 v94, v{W}, v21")
    rne(94)
    A("v_lshlrev_b32 v93, 16, v93")
    A("s_lshl_b32 s53, s55, 13"); A(f"s_add_u32 s53, s53, {E2_OFF}"); A("s_add_u32 s60, s53, 4096")
    stamp(2)
    A("s_barrier")
    A("s_barrier")
    stamp(4)
    lds_ = [f"buffer_load_dwordx4 v[{W+4*k}:{W+4*k+3}], v19, s[32:35], {'s53' if k < 4 else 's60'} offen offset:{(k&3)*1024} sc1" for k in range(8)]
    poll("L_E2POLL", lds_, [W + 4*k + 1 for k in range(8)] + [W + 4*k + 3 for k in range(8)], 8)
    sum_pairs(8)
    A(f"v_mul_f32 v{W}, v{W}, v94")
    rne(W)
    A(f"v_add_f32 v{W}, v{W}, v93")
    A(f"v_cvt_pk_bf16_f32 v{W}, v{W}, v{W}")
    A("s_mov_b32 exec_hi, 0")
    A(f"global_store_short v92, v{W}, s[22:23]")
    A("s_cmp_eq_u32 s55, 0")
    A("s_cbranch_scc0 L_fin")
    A("s_mov_b32 exec_lo, 1")
    A("v_mov_b32 v21, s31"); A(f"v_mov_b32 v22, {GEN_OFF}")
    A("buffer_store_dword v21, v22, s[32:35], 0 offen")
    A("s_branch L_fin")
    LB("L_H2_IDLE")
    A("s_barrier"); A("s_barrier")
    A("s_branch L_fin")
    LB("L_H0")
    A("v_and_b32 v21, 3, v0"); A("v_lshlrev_b32 v21, 4, v21")
    A("s_mov_b32 s50, 0")
    LB("L_MLPOLL")
    A("s_sleep 8")
    A(f"ds_read_b128 v[24:27], v21 offset:{L_ML}")
    A("s_add_u32 s50, s50, 1")
    A("s_waitcnt lgkmcnt(0)")
    A("v_cmp_eq_u32 vcc, 0, v26")
    A("s_cmp_gt_u32 s50, 0x40000")
    A("s_cbranch_scc1 L_MLPOLL_x")
    A("s_cbranch_vccnz L_MLPOLL")
    LB("L_MLPOLL_x")
    def quad(op, d, s):
        A(f"{op}_dpp v{d}, v{s}, v{s} quad_perm:[1,0,3,2] {DPPF}"); A("s_nop 1")
        A(f"{op}_dpp v{d}, v{d}, v{d} quad_perm:[2,3,0,1] {DPPF}")
    quad("v_max_f32", 28, 24)
    A("v_sub_f32 v24, v24, v28"); A(f"v_mul_f32 v24, 0x{LOG2E:08x}, v24"); A("v_exp_f32 v24, v24"); A("s_nop 0")
    A("v_mul_f32 v25, v24, v25"); A("s_nop 1")
    quad("v_add_f32", 29, 25)
    A("v_log_f32 v32, v29"); A("v_rcp_f32 v29, v29")
    A(f"v_fmac_f32 v32, 0x{LOG2E:08x}, v28")
    A("v_mul_f32 v24, v24, v29")
    A("v_mov_b32 v33, s31"); A("v_mov_b32 v34, v32"); A("v_mov_b32 v35, s31")
    A("s_lshl_b32 s53, s28, 10"); A(f"s_add_u32 s53, s53, {LX_OFF}")
    A("s_lshl_b32 s54, s29, 7"); A("s_add_u32 s54, s54, s53")
    A("s_lshl_b32 s60, s30, 9"); A("s_add_u32 s53, s53, s60")
    A("s_mov_b64 exec, 0xff")
    A("buffer_store_dwordx4 v[32:35], v19, s[32:35], s54 offen sc1")
    A("s_mov_b64 exec, -1")
    A("v_lshlrev_b32 v21, 3, v21")
    poll("L_LXPOLL", ["buffer_load_dwordx2 v[36:37], v21, s[32:35], s53 offen sc1"], [37], 8, sleep=32, pre=lxpre)
    quad("v_max_f32", 28, 36)
    A("v_sub_f32 v36, v36, v28"); A("v_sub_f32 v32, v32, v28")
    A("v_exp_f32 v36, v36"); A("v_exp_f32 v32, v32"); A("s_nop 1")
    quad("v_add_f32", 29, 36)
    A("v_rcp_f32 v29, v29")
    A("v_mul_f32 v24, v24, v32"); A("v_mul_f32 v24, v24, v29"); A("s_nop 1")
    for s in range(4):
        A(f"v_mov_b32_dpp v{28+s}, v24 quad_perm:[{s},{s},{s},{s}] {DPPF}")
    A("v_lshlrev_b32 v21, 2, v0")
    A("s_lshl_b32 s54, s28, 13"); A(f"s_add_u32 s54, s54, {E1_OFF}"); A("s_lshl_b32 s53, s29, 10"); A("s_add_u32 s54, s54, s53")
    A("v_mov_b32 v35, s31")
    A("s_mov_b32 s55, 4")
    stamp(2)
    A("s_barrier")
    stamp(3)
    po = L_PART // 256
    assert L_PART % 256 == 0
    for m in range(12):
        A(f"ds_read2st64_b32 v[{40+2*m}:{41+2*m}], v21 offset0:{po+2*m} offset1:{po+2*m+1}")
    for e in range(24):
        k, i = divmod(e, 3)
        if e % 6 == 0: A(f"s_waitcnt lgkmcnt({9 - 3*(e//6)})")
        if k == 0: A(f"v_mul_f32 v{32+i}, v28, v{40+e}")
        else: A(f"v_fmac_f32 v{32+i}, v{28 + k//2}, v{40+e}")
    A("buffer_store_dwordx4 v[32:35], v19, s[32:35], s54 offen sc1")
    A("s_branch L_WO_PRE")

    LB("L_STREAM")
    A(f"s_load_dword s31, s[26:27], {GEN_OFF}")
    for idx in range(WIN, 12): issue(idx)
    srd(40, 8, 100663296); srd(44, 12, 6144 * 640 * 2); srd(32, 26, WS_BYTES)
    wgmap(omap, 58, 59)
    A("v_bfe_u32 v4, v0, 3, 1"); A("v_lshrrev_b32 v5, 4, v0"); A("v_lshl_add_u32 v4, v4, 3, v5")
    A("v_mul_u32_u24 v2, 384, v4"); A("v_and_b32 v5, 7, v0"); A("v_lshl_add_u32 v2, v5, 4, v2")
    A("v_mul_u32_u24 v76, 6554, v0"); A("v_lshrrev_b32 v76, 16, v76")
    A("v_mul_u32_u24 v5, 10, v76"); A("v_sub_u32 v5, v0, v5")
    A("v_mul_u32_u24 v76, 1280, v76"); A("v_lshl_add_u32 v76, v5, 4, v76")
    A("s_mul_i32 s54, s58, 192"); A("s_mul_i32 s48, s55, 48"); A("s_add_u32 s54, s54, s48"); A("s_mul_i32 s54, s54, 1280")
    A("s_mul_i32 s48, s59, 160"); A("s_add_u32 s54, s54, s48")
    A(f"s_mul_i32 s56, s55, 7680"); A(f"s_add_u32 s56, s56, {L_WO}")
    A("v_lshrrev_b32 v5, 5, v0"); A("v_mul_u32_u24 v77, 768, v5"); A("v_and_b32 v5, 7, v0"); A("v_lshl_add_u32 v77, v5, 5, v77")
    A("v_bfe_u32 v5, v0, 4, 1"); A("v_lshl_add_u32 v77, v5, 4, v77")
    A("s_mul_i32 s48, s55, 1536"); A("v_add_u32 v77, s48, v77")
    amasks(4, 78)
    BQ = 28
    for r in range(24): A(f"v_mov_b32 v{BQ+r}, 0")
    A("v_mov_b32 v79, 0xff800000")
    for idx in range(12, R): issue(idx)
    stamp(1)
    A("s_barrier")
    A("s_mov_b32 exec_lo, 0x000f000f"); A("s_mov_b32 exec_hi, 0x00f000f0")
    for i in range(3): A(f"ds_read_b128 v[{BQ+4*i}:{BQ+4*i+3}], v3 offset:{L_Q + 128*i}")
    A("s_mov_b32 exec_lo, 0x0f000f00"); A("s_mov_b32 exec_hi, 0xf000f000")
    for i in range(3): A(f"ds_read_b128 v[{BQ+12+4*i}:{BQ+12+4*i+3}], v3 offset:{L_Q + 128*i}")
    A("s_mov_b64 exec, -1")
    A("s_waitcnt lgkmcnt(0)")
    A(f"s_add_u32 s31, s31, 0x{TAGC:08x}")
    stamp(2)
    S = 52
    def extract(t):
        a = 8 + 4 * (t & 1)
        v = S + t
        A(f"v_mov_b32_dpp v{v}, v{a} quad_perm:[0,0,0,0] {DPPF}")
        for k in (1, 2, 3):
            A(f"v_add_f32_dpp v{v}, v{a+k}, v{v} quad_perm:[{k},{k},{k},{k}] {DPPF}")
        rne(v)
        A(f"v_mul_f32 v{v}, 0x{SCALE:08x}, v{v}")
        rne(v)
        A(f"v_max_f32 v79, v79, v{v}")
    n = len(loads)
    def pexp(t):
        v = S + t
        A(f"v_sub_f32 v{v}, v{v}, v79")
        A(f"v_mul_f32 v{v}, 0x{LOG2E:08x}, v{v}")
        A(f"v_exp_f32 v{v}, v{v}")
        A("s_nop 0")
        if t == 0: A(f"v_mov_b32 v80, v{v}")
        else: A(f"v_add_f32 v80, v80, v{v}")
        A(f"v_cvt_pk_bf16_f32 v{v}, v{v}, v{v}")
    def target(idx):
        fl = LK if idx < 96 else WIN
        return max(fl, R - max(0, idx - WIN + 1) // 2)
    for idx in range(n):
        ten, t, s, i = loads[idx]
        r = RB + 4 * (idx % R)
        if ten == "V" and s == 0 and i == 0:
            if t == 0:
                A("s_nop 7")
                extract(15)
                A("s_nop 1")
                A(f"v_max_f32_dpp v79, v79, v79 row_half_mirror {DPPF}"); A("s_nop 1")
                A(f"v_max_f32_dpp v79, v79, v79 row_mirror {DPPF}")
                xrow_reduce("v_max_f32", 79, 80)
                pexp(0)
                stamp(3)
                A("s_nop 0")
            p = S + t
            A(f"v_and_b32 v68, v{p}, v4"); A(f"v_and_b32 v69, v{p}, v5")
            A(f"v_and_b32_dpp v70, v{p}, v6 row_half_mirror {DPPF}"); A(f"v_and_b32_dpp v71, v{p}, v7 row_half_mirror {DPPF}")
            A(f"v_and_b32_dpp v72, v{p}, v4 row_half_mirror {DPPF}"); A(f"v_and_b32_dpp v73, v{p}, v5 row_half_mirror {DPPF}")
            A(f"v_and_b32 v74, v{p}, v6"); A(f"v_and_b32 v75, v{p}, v7")
        if issued[0] - idx - 1 < WIN: A(f"s_waitcnt vmcnt({issued[0] - idx - 1})")
        elif ten == "V" and s == 0 and i == 0: A("s_nop 0")
        if ten == "K":
            mf(8 + 4 * (t & 1), r, BQ + 12 * s + 4 * i, s == 0 and i == 0)
        else:
            mf(16 + 4 * i, 68 + 4 * s, r, t == 0 and s == 0)
        while issued[0] < NTOT and issued[0] - idx <= target(idx) and issued[0] - R <= idx:
            issue(issued[0])
        if ten == "K" and s == 1 and i == 2 and t > 0:
            A("s_nop 1")
            extract(t - 1)
        vi = idx - 96
        if 0 <= vi < 15:
            pexp(vi + 1)
        if vi == 15:
            A(f"v_add_f32_dpp v80, v80, v80 row_half_mirror {DPPF}"); A("s_nop 1")
            A(f"v_add_f32_dpp v80, v80, v80 row_mirror {DPPF}")
            xrow_reduce("v_add_f32", 80, 81)
            A("v_mov_b32 v8, v79"); A("v_mov_b32 v9, v80"); A("v_mov_b32 v10, 1"); A("v_mov_b32 v11, 1")
            A("s_lshl_b32 s48, s55, 4"); A("v_mov_b32 v81, s48")
            A(f"ds_write_b128 v81, v[8:11] offset:{L_ML}")
    A("s_mov_b32 exec_lo, 0x00ff00ff"); A("s_mov_b32 exec_hi, 0xff00ff00")
    A("s_nop 5")
    for i in range(3):
        A(f"ds_write_b128 v77, v[{16+4*i}:{19+4*i}] offset:{L_PART + 256*i}")
    A("s_mov_b64 exec, -1")
    while issued[0] < NTOT: issue(issued[0], nowait=True)
    A("s_waitcnt lgkmcnt(0)")
    stamp(4)
    A("s_barrier")
    A("s_waitcnt vmcnt(0)")
    LB("L_WO_PRE")
    A("v_bfe_u32 v1, v0, 1, 1"); A("v_mul_u32_u24 v1, 384, v1"); A("v_lshrrev_b32 v2, 4, v0"); A("v_lshl_add_u32 v1, v2, 4, v1")
    A("v_bfe_u32 v3, v0, 2, 2"); A("v_lshl_add_u32 v2, v2, 3, v3"); A("v_mul_u32_u24 v2, 160, v2")
    A("v_and_b32 v3, 3, v0"); A("v_lshl_add_u32 v2, v3, 3, v2")
    A("s_lshl_b32 s48, s55, 5"); A("v_add_u32 v2, s48, v2")
    A("v_lshlrev_b32 v3, 4, v0")
    A("s_mul_i32 s48, s59, 5"); A("s_add_u32 s48, s48, s55"); A("s_lshl_b32 s48, s48, 5"); A("s_add_u32 s48, s48, s58")
    A("s_lshl_b32 s48, s48, 8"); A(f"s_add_u32 s48, s48, {E2_OFF}")
    stamp(5)
    A("s_barrier")
    for s in range(6):
        A(f"ds_read_b128 v[{96+8*s}:{99+8*s}], v1 offset:{L_OBF + 64*s}")
        A(f"ds_read_b64_tr_b16 v[{100+8*s}:{101+8*s}], v2 offset:{L_WO + 5120*s}")
        A(f"ds_read_b64_tr_b16 v[{102+8*s}:{103+8*s}], v2 offset:{L_WO + 5120*s + 640}")
    for s in range(6):
        A(f"s_waitcnt lgkmcnt({min(15, 3*(5-s))})")
        mf(8, 96 + 8*s, 100 + 8*s, s == 0)
    A("s_mov_b32 exec_lo, 0xffff"); A("s_mov_b32 exec_hi, 0")
    A("s_nop 5")
    A("v_mov_b32 v9, s31"); A("v_mov_b32 v11, s31")
    A("buffer_store_dwordx4 v[8:11], v3, s[32:35], s48 offen sc1")
    LB("L_fin")
    if stamps:
        stamp(7)
        A("s_mov_b64 exec, 1")
        A("s_waitcnt lgkmcnt(0)")
        A("s_lshl_b32 s48, s2, 3"); A("s_add_u32 s48, s48, s3"); A("s_lshl_b32 s48, s48, 6"); A(f"s_add_u32 s48, s48, {STAMP_OFF}")
        A("v_mov_b32 v1, 0")
        for q in range(4):
            for k in range(4): A(f"v_mov_b32 v{4+k}, s{64+4*q+k}")
            A(f"buffer_store_dwordx4 v[4:7], v1, s[32:35], s48 offen offset:{16*q}")
            A("s_nop 1")
    LB("L_end")
    A("s_endpgm")
    L.append('.section .rodata,"a"'); L.append(".p2align 6"); L.append(f".amdhsa_kernel {KNAME}")
    for d in ["next_free_vgpr 256", "next_free_sgpr 96", "accum_offset 256", "group_segment_fixed_size 0", "kernarg_size 96",
              "user_sgpr_count 2", "user_sgpr_kernarg_segment_ptr 1", "system_sgpr_workgroup_id_x 1", "float_denorm_mode_32 3"]:
        L.append("  .amdhsa_" + d)
    L.append(".end_amdhsa_kernel")
    return "\n".join(L) + "\n"

if __name__ == "__main__":
    ap = argparse.ArgumentParser()
    ap.add_argument("-o", default="k.s")
    ap.add_argument("--R", type=int, default=42)
    ap.add_argument("--amap", default="xcd")
    ap.add_argument("--qmap", default="xcd7")
    ap.add_argument("--g1sh", type=int, default=1)
    ap.add_argument("--g1pre", type=int, default=200)
    ap.add_argument("--omap", default="xcd1")
    ap.add_argument("--stamps", action="store_true")
    ap.add_argument("--wo", default="nt")
    ap.add_argument("--w", default="nt")
    ap.add_argument("--WIN", type=int, default=5)
    ap.add_argument("--LK", type=int, default=10)
    ap.add_argument("--qsleep", type=int, default=60)
    ap.add_argument("--dbg", default="")
    ap.add_argument("--HW", type=int, default=6)
    ap.add_argument("--g2pre", type=int, default=480)
    ap.add_argument("--kf", default="nt")
    ap.add_argument("--vf", default="nt")
    a = ap.parse_args()
    open(a.o, "w").write(gen(R=a.R, HW=a.HW, g2pre=a.g2pre, qmap=a.qmap, g1sh=a.g1sh, g1pre=a.g1pre, amap=a.amap, omap=a.omap, stamps=a.stamps, wo_flags=a.wo, w_flags=a.w, WIN=a.WIN, LK=a.LK,
                             qsleep=a.qsleep, dbg=tuple(a.dbg.split(',')), kf=a.kf.replace('+', ' '), vf=a.vf.replace('+', ' ')))
```

```python
import sys, argparse
KNAME = "recurrent_scan__gqa_block_cached__glu_gated_bilinear__decode_kernel"
HEADER = open("recurrent_scan__gqa_block_cached__glu_gated_bilinear__decode.s.ref").read().split("; Override launch")[0]

GEN_OFF = 0
LX_OFF = 4096
QS_OFF = LX_OFF + 256 * 128
E1_OFF = QS_OFF + 32 * 3 * 8192
E2_OFF = E1_OFF + 256 * 1024
G1_OFF = E2_OFF + 40 * 32 * 256
G2_OFF = G1_OFF + 24 * 10 * 2048
CNT_OFF = G2_OFF + 40 * 24 * 256
PX_OFF = CNT_OFF + 64 * 128
WS_USED = PX_OFF + 64 * 96 * 128
STAMP_OFF = 4 << 20
WS_BYTES = 402653184
L_XN = 0
L_Q = 2048
L_ML = 2432
L_W = 2496
L_OBF = 2560
L_HS = 3328
L_PART = 3840
L_PP = 9984
L_WO = 11520
LDS_BYTES = L_WO + 30720
TAGC = 0x9E3779B1
LOG2E = 0x3FB8AA3B
SCALE = 0x3D93CD3A
DPPF = "row_mask:0xf bank_mask:0xf"

def gen(R=42, amap="xcd", omap="xcd1", qmap="xcd7", g1sh=1, g2sh=0, g1pre=120, lxpre=100, stamps=False, wo_flags="nt", w_flags="nt", red_base=216, WIN=5, HW=4, LK=10, g2pre=480,
        qsleep=40, dbg=(), kf='nt', vf='nt', Z=3, chk=9, woh=0, wopre=0, SPN=0, SPW=10, fast=0, nd=0, nv=0):
    L = []
    A = lambda s: L.append("  " + s)
    LB = lambda s: L.append(s + ":")
    C = lambda s: L.append("  ; " + s)
    def stamp(k):
        if stamps:
            A(f"s_memrealtime s[{64+2*k}:{65+2*k}]")
    def srd(d, plo, size):
        A(f"s_mov_b32 s{d}, s{plo}"); A(f"s_mov_b32 s{d+1}, s{plo+1}")
        A(f"s_mov_b32 s{d+2}, {size}"); A(f"s_mov_b32 s{d+3}, 0x20000")
    def amasks(base, tmp):
        A(f"v_and_b32 v{tmp}, 1, v0")
        A(f"v_lshlrev_b32 v{tmp}, 4, v{tmp}")
        A("s_mov_b32 s48, 0xffff")
        A(f"v_lshlrev_b32_e64 v{tmp}, v{tmp}, s48")
        for r in range(4):
            A(f"s_mov_b32 s48, 0x{0x03030303 << (2*r):08x}")
            A("s_mov_b32 s49, s48")
            A(f"v_cndmask_b32_e64 v{base+r}, 0, v{tmp}, s[48:49]")
    def xrow_reduce(op, v, t):
        A(f"v_mov_b32 v{t}, v{v}"); A("s_nop 1")
        A(f"v_permlane16_swap_b32 v{t}, v{v}")
        A(f"{op} v{v}, v{v}, v{t}")
        A(f"v_mov_b32 v{t}, v{v}"); A("s_nop 1")
        A(f"v_permlane32_swap_b32 v{t}, v{v}")
        A(f"{op} v{v}, v{v}, v{t}")
    def rne(v):
        A(f"v_cvt_pk_bf16_f32 v{v}, v{v}, v{v}")
        A(f"v_and_b32 v{v}, 0xffff0000, v{v}")
    def epilogue(P, Q, G, kind):
        for a in (P, Q, P + 1, Q + 1):
            A(f"v_permlane32_swap_b32 v{a}, v{a+2}")
        A(f"v_mov_b32 v{G+1}, s31"); A(f"v_mov_b32 v{G+3}, s31")
        lo = lambda d, x: A(f"v_add_f32_dpp v{d}, v{x+2}, v{x} row_shl:8 {DPPF}")
        hi = lambda d, x: A(f"v_add_f32_dpp v{d}, v{x}, v{x+2} row_shr:8 {DPPF}")
        if kind == "b":
            lo(G, P); lo(G + 2, P + 1); hi(G, Q); hi(G + 2, Q + 1)
        else:
            lo(G, P); lo(G + 2, Q); hi(G, P + 1); hi(G + 2, Q + 1)
    def poll(label, loads, tagregs, tmp, sleep=0, pre=0):
        while pre > 0:
            A(f"s_sleep {min(pre, 127)}"); pre -= 127
        if label in dbg:
            for ld in loads: A(ld)
            A("s_waitcnt vmcnt(0)")
            return
        A("s_mov_b32 s50, 0")
        LB(label)
        for ld in loads: A(ld)
        A("s_add_u32 s50, s50, 1")
        A("s_waitcnt vmcnt(0)")
        A(f"v_xor_b32 v{tmp}, s31, v{tagregs[0]}")
        rest = list(tagregs[1:])
        while rest:
            if len(rest) >= 2:
                A(f"v_xor_b32 v{tmp+1}, s31, v{rest[0]}"); A(f"v_xor_b32 v{tmp+2}, s31, v{rest[1]}")
                A(f"v_or3_b32 v{tmp}, v{tmp}, v{tmp+1}, v{tmp+2}"); rest = rest[2:]
            else:
                A(f"v_xor_b32 v{tmp+1}, s31, v{rest[0]}"); A(f"v_or_b32 v{tmp}, v{tmp}, v{tmp+1}"); rest = rest[1:]
        A(f"v_cmp_ne_u32 vcc, 0, v{tmp}")
        A("s_cmp_gt_u32 s50, 0x40000")
        A(f"s_cbranch_scc1 {label}_x")
        if sleep:
            A(f"s_cbranch_vccz {label}_x")
            A(f"s_sleep {sleep}")
            A(f"s_branch {label}")
        else:
            A(f"s_cbranch_vccnz {label}")
        LB(label + "_x")
    def wgmap(kind, sh, sj):
        if kind == "mix":
            A("s_bfe_u32 s48, s2, 0x20001")
            A("s_lshr_b32 s49, s2, 3"); A(f"s_lshl_b32 s{sh}, s48, 3"); A(f"s_sub_u32 s{sh}, s49, s{sh}"); A(f"s_and_b32 s{sh}, s{sh}, 31")
            A(f"s_and_b32 s{sj}, s2, 1"); A(f"s_lshl2_add_u32 s{sj}, s{sj}, s48")
        elif kind.startswith("xcd"):
            k = int(kind[3:] or 0)
            if k:
                A(f"s_add_u32 s48, s2, {k}"); A("s_and_b32 s48, s48, 7")
            else:
                A("s_and_b32 s48, s2, 7")
            A("s_lshr_b32 s49, s2, 3"); A(f"s_lshr_b32 s{sh}, s49, 3")
            A(f"s_lshl2_add_u32 s{sh}, s48, s{sh}"); A(f"s_and_b32 s{sj}, s49, 7")
        else:
            A(f"s_lshr_b32 s{sh}, s2, 3"); A(f"s_and_b32 s{sj}, s2, 7")
    mf = lambda d, a, b, first: A(f"v_mfma_f32_16x16x32_bf16 v[{d}:{d+3}], v[{a}:{a+3}], v[{b}:{b+3}], {'0' if first else f'v[{d}:{d+3}]'}")

    L.append(HEADER.rstrip("\n"))
    L.append(f"; @launch grid=(256,1,1) block=(512,1,1) lds={LDS_BYTES}")
    L.append('.amdgcn_target "amdgcn-amd-amdhsa--gfx950"')
    L.append(".text"); L.append(f".globl {KNAME}"); L.append(".p2align 8"); L.append(f".type {KNAME},@function")
    LB(KNAME)
    A("s_cmp_ge_u32 s2, 256")
    A("s_cbranch_scc1 L_end")
    stamp(0)
    A("s_load_dwordx16 s[4:19], s[0:1], 0")
    A("s_load_dwordx8 s[20:27], s[0:1], 64")
    A("v_lshrrev_b32 v1, 6, v0")
    A("v_and_b32 v0, 63, v0")
    A("v_readfirstlane_b32 s3, v1")
    wgmap(amap, 28, 29)
    A("s_lshr_b32 s30, s29, 2")
    A("s_cmp_lt_u32 s3, 4")
    A("s_cbranch_scc1 L_HELP")
    RB = 84
    NS = 16 - Z
    NP = 16 * Z
    SETA, SETB, PA, PB, TK = 84, 28, 8, 10, 12
    loads = []
    for ten in ("K", "V"):
        for t in range(16 if ten == "K" else NS):
            for s in range(2):
                for i in range(3):
                    loads.append((ten, t, s, i))
    ops = [("L", k) for k in range(len(loads))]
    if Z:
        ops.insert(len(ops) - 7, ("A", 0))
    elif not woh:
        ops += [("D", k) for k in range(nd, 8)]
        for k in range(nd):
            ops.insert(len(loads) - nv + k, ("D", k))
    pos = {k: p for p, (kind, k) in enumerate(ops) if kind == "L"}
    def slot(k):
        if Z and k >= len(loads) - 6: return SETB + 4 * (k - (len(loads) - 6))
        return RB + 4 * (k % R)
    issued = [0]
    NTOT = len(ops)
    def winf(p):
        return SPW if (SPN and p >= len(loads) - SPN) else WIN
    def dma(k):
        A("s_mov_b32 exec_hi, 0x0fffffff")
        A(f"s_add_u32 m0, s56, {960*k}")
        if k: A("s_add_u32 s54, s54, 7680")
        else: A("s_nop 0")
        if "nowo" not in dbg: A(f"buffer_load_dwordx4 v76, s[44:47], s54 offen {wo_flags} lds")
        else: A("buffer_load_dword v78, v76, s[44:47], 0 offen")
        A("s_mov_b32 exec_hi, -1")
    def claim():
        A("s_mov_b64 exec, 1")
        A(f"v_mov_b32 v{TK}, 1")
        A(f"buffer_atomic_add v{TK}, v13, s[32:35], s60 offen sc0 sc1")
        A("s_mov_b64 exec, -1")
    def issue(p, nowait=False):
        if p >= WIN and not nowait: A(f"s_waitcnt vmcnt({winf(p)-1})")
        kind, idx = ops[p]
        issued[0] += 1
        if kind == "D":
            dma(idx); return
        if kind == "A":
            A("s_mov_b32 s50, 0")
            LB("L_GATE")
            A(f"ds_read_b64 v[82:83], v81 offset:{L_W}")
            A("s_add_u32 s50, s50, 1")
            A("s_waitcnt lgkmcnt(0)")
            A("v_cmp_eq_u32 vcc, 0, v83")
            A("s_cmp_gt_u32 s50, 0x40000")
            A("s_cbranch_scc1 L_GATE_x")
            A("s_cbranch_vccz L_GATE_x")
            A("s_sleep 4")
            A("s_branch L_GATE")
            LB("L_GATE_x")
            stamp(6)
            claim(); return
        ten, t, s, i = loads[idx]
        r = slot(idx)
        if ten == "K":
            A(f"buffer_load_dwordx4 v[{r}:{r+3}], v1, s[36:39], s52 offen offset:{s*3072 + i*128} {kf}")
            if s == 1 and i == 2 and t < 15: A("s_add_u32 s52, s52, 6144")
        else:
            A(f"buffer_load_dwordx4 v[{r}:{r+3}], v2, s[40:43], s53 offen offset:{s*1536 + i*128} {vf}")
            if s == 1 and i == 2 and t < 15: A("s_add_u32 s53, s53, 6144")
    A("s_sub_u32 s55, s3, 4")
    A("v_lshrrev_b32 v4, 5, v0"); A("v_bfe_u32 v5, v0, 2, 2"); A("v_lshl_add_u32 v4, v4, 2, v5")
    A("v_mul_u32_u24 v1, 384, v4")
    A("v_and_b32 v5, 3, v0"); A("v_bfe_u32 v6, v0, 4, 1"); A("v_lshl_add_u32 v5, v6, 2, v5")
    A("v_lshlrev_b32 v3, 4, v5")
    A("v_add_u32 v1, v1, v3")
    A("s_lshl_b32 s48, s30, 5"); A("s_add_u32 s48, s48, s28"); A("s_lshl_b32 s48, s48, 2")
    A("s_and_b32 s49, s29, 3"); A("s_add_u32 s48, s48, s49"); A("s_lshl_b32 s48, s48, 2"); A("s_add_u32 s48, s48, s55")
    A("s_mul_i32 s52, s48, 98304")
    A("s_mov_b32 s53, s52")
    A("s_mov_b32 s38, 100663296"); A("s_mov_b32 s39, 0x20000")
    A("s_waitcnt lgkmcnt(0)")
    A("s_mov_b32 s36, s6"); A("s_mov_b32 s37, s7")
    for idx in range(WIN): issue(idx)
    A("s_branch L_STREAM")

    LB("L_HELP")
    A("v_lshrrev_b32 v3, 5, v0")
    A("v_and_b32 v4, 31, v0")
    A("v_mul_u32_u24 v3, 1280, v3")
    A("v_lshl_add_u32 v1, v4, 4, v3")
    A("v_lshl_add_u32 v2, v4, 3, v3")
    A("v_lshrrev_b32 v5, 3, v0")
    A("v_and_b32 v6, 7, v0")
    A("v_lshlrev_b32 v6, 4, v6")
    wgmap(qmap, 62, 63)
    A("s_lshr_b32 s49, s2, 3")
    A("s_sub_u32 s51, s49, 15"); A("s_cmp_ge_u32 s49, 15"); A("s_cselect_b32 s49, s51, s49")
    A("s_mul_i32 s57, s49, 13108"); A("s_lshr_b32 s57, s57, 16")
    A("s_mul_i32 s52, s57, 5"); A("s_sub_u32 s52, s49, s52")
    A("s_mul_i32 s55, s63, 160"); A("s_lshl_b32 s54, s52, 8")
    A("s_cmp_eq_u32 s3, 3")
    A("s_cselect_b32 s55, s54, s55")
    A("v_mul_u32_u24 v7, 12288, v5"); A("v_add_u32 v7, v7, v6")
    A(f"s_mul_i32 s53, s63, {80*12288}"); A("s_mul_i32 s54, s62, 384"); A("s_add_u32 s53, s53, s54")
    A("s_lshl_b32 s54, s3, 7"); A("s_add_u32 s53, s53, s54")
    A("s_mov_b32 s46, 2560"); A("s_mov_b32 s47, 0x20000")
    A(f"s_mov_b32 s38, {640*6144*2}"); A("s_mov_b32 s39, 0x20000")
    A("s_waitcnt lgkmcnt(0)")
    A("s_mov_b32 s44, s4"); A("s_mov_b32 s45, s5")
    A("buffer_load_dwordx4 v[8:11], v1, s[44:47], 0 offen")
    A("buffer_load_dwordx4 v[12:15], v1, s[44:47], 0 offen offset:512")
    A("buffer_load_dwordx2 v[16:17], v2, s[44:47], 0 offen offset:1024")
    A("buffer_load_dwordx2 v[18:19], v2, s[44:47], s55 offen")
    W = 96
    A("s_mov_b32 s36, s10"); A("s_mov_b32 s37, s11")
    A("s_cmp_eq_u32 s3, 3")
    A("s_cbranch_scc1 L_LN")
    for t in range(10):
        if "nowq" in dbg: break
        A(f"buffer_load_dwordx4 v[{W+4*t}:{W+4*t+3}], v7, s[36:39], s53 offen {w_flags}")
        if t < 9: A("s_add_u32 s53, s53, 98304")
    LB("L_LN")
    A(f"s_load_dword s31, s[26:27], {GEN_OFF}")
    srd(32, 26, WS_BYTES)
    amasks(88, 20)
    A("s_cmp_eq_u32 s3, 3")
    A("s_cselect_b32 s54, 1024, 0")
    A("v_lshrrev_b32 v21, 5, v0"); A("v_lshlrev_b32 v21, 9, v21"); A("v_and_b32 v22, 1, v0"); A("v_lshl_add_u32 v21, v22, 8, v21")
    A("v_bfe_u32 v22, v0, 1, 4"); A("v_lshl_add_u32 v21, v22, 2, v21"); A("v_add_u32 v21, s54, v21")
    A("v_lshl_add_u32 v22, v5, 6, s54")
    A("v_mov_b32 v23, 0"); A("v_lshlrev_b32 v24, 2, v0"); A("v_and_b32 v24, 127, v24")
    A(f"ds_write_b32 v24, v23 offset:{L_ML}")
    A("s_cbranch_scc0 L_LN_GO")
    A("s_waitcnt vmcnt(0)")
    LB("L_LN_GO")
    A("s_waitcnt vmcnt(10)" if "nowq" not in dbg else "s_waitcnt vmcnt(0)")
    stamp(5)
    U = 24
    for k in range(10):
        A(f"v_lshlrev_b32 v{U+2*k}, 16, v{8+k}")
        A(f"v_and_b32 v{U+2*k+1}, 0xffff0000, v{8+k}")
    def half_reduce(v, t):
        for sh in (8, 4, 2, 1):
            A("s_nop 1")
            A(f"v_add_f32_dpp v{v}, v{v}, v{v} row_ror:{sh} {DPPF}")
        A(f"v_mov_b32 v{t}, v{v}"); A("s_nop 1")
        A(f"v_permlane16_swap_b32 v{t}, v{v}")
        A(f"v_add_f32 v{v}, v{v}, v{t}")
    pk = lambda r: f"v[{r}:{r+1}]"
    A(f"v_pk_add_f32 v[60:61], {pk(U)}, {pk(U+2)}")
    for k in range(2, 10): A(f"v_pk_add_f32 v[60:61], v[60:61], {pk(U+2*k)}")
    A("v_add_f32 v60, v60, v61")
    half_reduce(60, 61)
    A("v_mul_f32 v60, 0x3acccccd, v60")
    for k in range(10):
        A(f"v_pk_add_f32 {pk(U+2*k)}, {pk(U+2*k)}, v[60:61] op_sel_hi:[1,0] neg_lo:[0,1] neg_hi:[0,1]")
    A(f"v_pk_mul_f32 v[62:63], {pk(U)}, {pk(U)}")
    for k in range(1, 10): A(f"v_pk_fma_f32 v[62:63], {pk(U+2*k)}, {pk(U+2*k)}, v[62:63]")
    A("v_add_f32 v62, v62, v63")
    half_reduce(62, 63)
    A("v_mul_f32 v62, 0x3acccccd, v62")
    rne(60); rne(62)
    A("v_add_f32 v62, 0x3727c5ac, v62")
    rne(62)
    A("v_sqrt_f32 v62, v62")
    A("v_lshlrev_b32 v56, 16, v18"); A("v_and_b32 v57, 0xffff0000, v18")
    rne(62)
    A("v_rcp_f32 v62, v62")
    A("v_lshlrev_b32 v58, 16, v19"); A("v_and_b32 v59, 0xffff0000, v19")
    for k in range(4): A(f"v_sub_f32 v{56+k}, v{56+k}, v60")
    A("v_cvt_pk_bf16_f32 v18, v56, v57"); A("v_cvt_pk_bf16_f32 v19, v58, v59")
    A("v_lshlrev_b32 v56, 16, v18"); A("v_and_b32 v57, 0xffff0000, v18")
    A("v_lshlrev_b32 v58, 16, v19"); A("v_and_b32 v59, 0xffff0000, v19")
    for k in range(4): A(f"v_mul_f32 v{56+k}, v{56+k}, v62")
    for k in range(4):
        A(f"v_cvt_pk_bf16_f32 v{56+k}, v{56+k}, v{56+k}")
        A(f"ds_write_b32 v21, v{56+k} offset:{L_XN + 64*k}")
    X = 24
    for q in range(4):
        for b in range(2):
            A(f"ds_read_b128 v[{X+16*b+4*q}:{X+16*b+4*q+3}], v22 offset:{L_XN + 512*b + 16*q}")
    A("v_and_b32 v18, 7, v0"); A("v_lshlrev_b32 v18, 6, v18")
    A("v_bfe_u32 v19, v0, 4, 1"); A("v_lshl_add_u32 v18, v19, 5, v18")
    A("v_lshrrev_b32 v19, 5, v0"); A("v_lshl_add_u32 v18, v19, 4, v18")
    A("v_bfe_u32 v20, v0, 3, 1")
    A("v_lshlrev_b32 v19, 4, v0")
    A("s_waitcnt lgkmcnt(0)")
    A(f"s_add_u32 s31, s31, 0x{TAGC:08x}")
    A("s_cmp_eq_u32 s3, 3")
    A("s_cbranch_scc1 L_H_B1")
    DP, DQ, AA = 64, 68, 72
    def abuild(t):
        for b in range(2):
            for r in range(4):
                A(f"v_and_b32 v{AA+4*b+r}, v{X+16*b+t}, v{88+r}")
    for t in range(10):
        abuild(t)
        A(f"s_waitcnt vmcnt({9-t})")
        mf(DP, AA, W + 4*t, t == 0)
        mf(DQ, AA + 4, W + 4*t, t == 0)
    stamp(6)
    if "noqx" in dbg: A("s_branch L_H_B1")
    A("s_mul_i32 s54, s62, 3"); A("s_add_u32 s54, s54, s3"); A("s_lshl_b32 s54, s54, 13")
    A("s_lshl_b32 s60, s63, 9"); A("s_add_u32 s54, s54, s60"); A(f"s_add_u32 s54, s54, {QS_OFF}")
    A("s_mul_i32 s53, s28, 3"); A("s_add_u32 s53, s53, s3"); A("s_lshl_b32 s53, s53, 13")
    A("s_lshl_b32 s60, s30, 12"); A("s_add_u32 s53, s53, s60"); A(f"s_add_u32 s53, s53, {QS_OFF}")
    A("v_lshl_add_u32 v21, v20, 12, v18")
    epilogue(DP, DQ, 80, "b")
    A("buffer_store_dwordx4 v[80:83], v21, s[32:35], s54 offen sc1")
    lds_ = [f"buffer_load_dwordx4 v[{24+4*k}:{27+4*k}], v19, s[32:35], s53 offen offset:{k*1024} sc1" for k in range(4)]
    poll("L_QPOLL", lds_, [25 + 2*k for k in range(8)], 8, sleep=12, pre=qsleep)
    for k in range(1, 4):
        A(f"v_add_f32 v24, v24, v{24+4*k}"); A(f"v_add_f32 v26, v26, v{26+4*k}")
    A("v_and_b32 v21, 31, v0"); A("v_lshlrev_b32 v21, 2, v21")
    A("v_lshrrev_b32 v22, 5, v0"); A("v_lshl_add_u32 v21, v22, 1, v21")
    A("v_permlane32_swap_b32 v24, v26")
    A("s_lshl_b32 s54, s3, 7")
    A("v_add_f32 v24, v24, v26")
    A("v_add_u32 v21, s54, v21")
    A("v_cvt_pk_bf16_f32 v24, v24, v24")
    A(f"ds_write_b16 v21, v24 offset:{L_Q}")
    A("s_waitcnt lgkmcnt(0)")
    LB("L_H_B1")
    stamp(1)
    A("s_barrier")
    wgmap(omap, 58, 59)
    A("s_cmp_eq_u32 s3, 0")
    A("s_cbranch_scc1 L_H0")
    A("s_cmp_eq_u32 s3, 2")
    A("s_cbranch_scc1 L_H2_PRE")
    A("s_cmp_eq_u32 s3, 1")
    A("s_cbranch_scc1 L_E1G")
    if "noglu" in dbg: A("s_branch L_E1G")
    A("s_cmp_ge_u32 s2, 240")
    A("s_cbranch_scc1 L_E1G")
    D4 = [64, 68, 224, 228]
    A("s_cmp_ge_u32 s2, 120")
    A("s_cbranch_scc1 L_G2")
    A(f"s_add_u32 s48, s2, {g1sh}"); A("s_and_b32 s48, s48, 7"); A("s_mul_i32 s51, s48, 3"); A("s_add_u32 s51, s51, s57")
    srd(36, 16, 640 * 1536 * 2); srd(40, 18, 640 * 1536 * 2)
    A("v_mul_u32_u24 v7, 3072, v5"); A("v_add_u32 v7, v7, v6")
    A(f"s_mul_i32 s53, s52, {128*3072}"); A("s_lshl_b32 s54, s51, 7"); A("s_add_u32 s53, s53, s54")
    LAG = HW // 2
    def g1c(t):
        abuild(t)
        A("s_nop 1")
        for mat in range(2):
            for b in range(2):
                mf(D4[2*mat+b], AA + 4*b, W + 8*t + 4*mat, t == 0)
    for t in range(16):
        if t >= LAG: A(f"s_waitcnt vmcnt({2*LAG-2})")
        A(f"buffer_load_dwordx4 v[{W+8*t}:{W+8*t+3}], v7, s[36:39], s53 offen {w_flags}")
        A(f"buffer_load_dwordx4 v[{W+8*t+4}:{W+8*t+7}], v7, s[40:43], s53 offen {w_flags}")
        if t < 15: A("s_add_u32 s53, s53, 24576")
        if t >= LAG: g1c(t - LAG)
    A("s_waitcnt vmcnt(0)")
    for t in range(16 - LAG, 16): g1c(t)
    A(f"s_mul_i32 s53, s51, {5*2048}"); A(f"s_add_u32 s53, s53, {G1_OFF}")
    A("s_lshl_b32 s54, s52, 11"); A("s_add_u32 s54, s54, s53")
    A("v_lshl_add_u32 v21, v20, 9, v18")
    A("s_nop 3")
    epilogue(D4[0], D4[1], 80, "b")
    epilogue(D4[2], D4[3], 84, "b")
    A("buffer_store_dwordx4 v[80:83], v21, s[32:35], s54 offen sc1")
    A("buffer_store_dwordx4 v[84:87], v21, s[32:35], s54 offen offset:1024 sc1")
    A("s_branch L_E1G")
    LB("L_G2")
    A(f"s_add_u32 s48, s2, {g2sh}"); A("s_and_b32 s48, s48, 7"); A("s_mul_i32 s56, s48, 3"); A("s_add_u32 s56, s56, s57")
    srd(44, 20, 1536 * 640 * 2)
    A("v_mul_u32_u24 v7, 1280, v5"); A("v_add_u32 v7, v7, v6")
    A(f"s_mul_i32 s53, s56, {64*1280}"); A("s_lshl_b32 s54, s52, 8"); A("s_add_u32 s53, s53, s54")
    for t in range(8):
        if t >= LAG: A(f"s_waitcnt vmcnt({2*LAG-2})")
        A(f"buffer_load_dwordx4 v[{W+8*t}:{W+8*t+3}], v7, s[44:47], s53 offen {w_flags}")
        A(f"buffer_load_dwordx4 v[{W+8*t+4}:{W+8*t+7}], v7, s[44:47], s53 offen offset:128 {w_flags}")
        if t < 7: A("s_add_u32 s53, s53, 10240")
    A(f"s_mul_i32 s53, s56, {5*2048}"); A(f"s_add_u32 s53, s53, {G1_OFF}")
    A("s_add_u32 s60, s53, 4096"); A("s_add_u32 s61, s53, 8192")
    quads = [W + 64 + 4*k for k in range(10)]
    sof = ["s53", "s60", "s61"]
    lds_ = [f"buffer_load_dwordx4 v[{quads[k]}:{quads[k]+3}], v19, s[32:35], {sof[k>>2]} offen offset:{(k&3)*1024} sc1" for k in range(10)]
    poll("L_G1POLL", lds_, [q + 1 for q in quads] + [q + 3 for q in quads], 8, sleep=100, pre=g1pre)
    for k in range(2, 10):
        base = quads[k & 1]
        A(f"v_add_f32 v{base}, v{base}, v{quads[k]}")
        A(f"v_add_f32 v{base+2}, v{base+2}, v{quads[k]+2}")
    g0, u0 = quads[0], quads[1]
    for e in range(2):
        rne(g0 + 2*e); rne(u0 + 2*e)
        A(f"v_mul_f32 v{g0+2*e}, v{g0+2*e}, v{u0+2*e}")
        A(f"v_cvt_pk_bf16_f32 v{8+e}, v{g0+2*e}, v{g0+2*e}")
    A("v_lshlrev_b32 v21, 3, v0")
    A(f"ds_write_b64 v21, v[8:9] offset:{L_HS}")
    A("v_lshlrev_b32 v21, 2, v5")
    for b in range(2):
        for t in range(8):
            A(f"ds_read_b32 v{X+16*b+t}, v21 offset:{L_HS + 256*b + 32*t}")
    A("s_waitcnt lgkmcnt(0)")
    for t in range(8):
        abuild(t)
        A("s_nop 1")
        for cg in range(2):
            for b in range(2):
                mf(D4[2*cg+b], AA + 4*b, W + 8*t + 4*cg, t == 0)
    A("v_bfe_u32 v21, v0, 1, 2"); A("v_mul_u32_u24 v21, 6144, v21")
    A("v_and_b32 v22, 0x7f, v18"); A("v_lshl_add_u32 v21, v22, 1, v21"); A("v_lshl_add_u32 v21, v20, 4, v21")
    A(f"s_mul_i32 s53, s52, {8*6144}"); A("s_lshl_b32 s54, s56, 8"); A("s_add_u32 s53, s53, s54")
    A(f"s_add_u32 s53, s53, {G2_OFF}"); A(f"s_add_u32 s54, s53, {4*6144}")
    epilogue(D4[0], D4[1], 80, "e")
    epilogue(D4[2], D4[3], 84, "e")
    A("buffer_store_dwordx4 v[80:83], v21, s[32:35], s53 offen sc1")
    A("buffer_store_dwordx4 v[84:87], v21, s[32:35], s54 offen sc1")
    LB("L_E1G")
    if woh:
        A("s_cmp_eq_u32 s3, 1")
        A("s_cbranch_scc0 L_E1G2")
        srd(44, 12, 6144 * 640 * 2)
        A("v_mul_u32_u24 v21, 6554, v0"); A("v_lshrrev_b32 v21, 16, v21")
        A("v_mul_u32_u24 v22, 10, v21"); A("v_sub_u32 v22, v0, v22")
        A("v_mul_u32_u24 v21, 1280, v21"); A("v_lshl_add_u32 v21, v22, 4, v21")
        A(f"s_mul_i32 s54, s58, {192*1280}"); A("s_mul_i32 s48, s59, 160"); A("s_add_u32 s54, s54, s48")
        A(f"s_mov_b32 s56, {L_WO}")
        A("s_mov_b32 s50, 32")
        pre = wopre
        while pre > 0:
            A(f"s_sleep {min(pre, 127)}"); pre -= 127
        A("s_mov_b32 exec_hi, 0x0fffffff")
        LB("L_WOL")
        A("s_mov_b32 m0, s56")
        A(f"s_waitcnt vmcnt({woh-1})")
        A(f"buffer_load_dwordx4 v21, s[44:47], s54 offen {wo_flags} lds")
        A("s_add_u32 s56, s56, 960"); A("s_add_u32 s54, s54, 7680")
        A("s_sub_u32 s50, s50, 1"); A("s_cmp_lg_u32 s50, 0"); A("s_cbranch_scc1 L_WOL")
        A("s_mov_b32 exec_hi, -1")
        A("s_waitcnt vmcnt(0)")
        LB("L_E1G2")
    A("s_lshr_b32 s55, s3, 1")
    A("s_lshl_b32 s53, s58, 13"); A(f"s_add_u32 s53, s53, {E1_OFF}"); A("s_lshl_b32 s54, s55, 12"); A("s_add_u32 s53, s53, s54")
    A("s_mul_i32 s54, s55, 384")
    A("v_bfe_u32 v21, v0, 2, 2"); A("v_bfe_u32 v22, v0, 4, 1"); A("v_lshl_add_u32 v21, v21, 1, v22")
    A("v_and_b32 v22, 0x23, v0"); A("v_lshl_add_u32 v21, v21, 2, v22")
    A("v_lshl_add_u32 v21, v21, 1, s54")
    stamp(2)
    A("s_barrier")
    stamp(3)
    lds_ = [f"buffer_load_dwordx4 v[{64+4*k}:{67+4*k}], v19, s[32:35], s53 offen offset:{k*1024} sc1" for k in range(4)]
    poll("L_E1POLL", lds_, [67 + 4*k for k in range(4)], 8)
    for i in range(3):
        A(f"v_add_f32 v{64+i}, v{64+i}, v{68+i}"); A(f"v_add_f32 v{72+i}, v{72+i}, v{76+i}")
    for i in range(3):
        A(f"v_add_f32 v{64+i}, v{64+i}, v{72+i}")
    for i in range(3):
        A(f"v_cvt_pk_bf16_f32 v{64+i}, v{64+i}, v{64+i}")
        A(f"ds_write_b16 v21, v{64+i} offset:{L_OBF + 128*i}")
    A("s_waitcnt lgkmcnt(0)")
    stamp(4)
    A("s_barrier")
    A("s_branch L_fin")
    LB("L_H2_PRE")
    A(f"s_cmp_lt_u32 s2, {red_base}")
    A("s_cbranch_scc1 L_H2_IDLE")
    A(f"s_cmp_ge_u32 s2, {red_base+40}")
    A("s_cbranch_scc1 L_H2_IDLE")
    A(f"s_sub_u32 s55, s2, {red_base}")
    A("v_bfe_u32 v21, v0, 4, 1"); A("v_mul_u32_u24 v21, 1280, v21")
    A("v_and_b32 v22, 15, v0"); A("v_lshl_add_u32 v21, v22, 1, v21")
    A("s_lshl_b32 s54, s55, 5"); A("v_add_u32 v92, s54, v21")
    A("global_load_ushort v93, v92, s[4:5]")
    A("s_mul_i32 s53, s55, 6144"); A(f"s_add_u32 s53, s53, {G2_OFF}"); A("s_add_u32 s60, s53, 4096")
    lds_ = [f"buffer_load_dwordx4 v[{W+4*k}:{W+4*k+3}], v19, s[32:35], {'s53' if k < 4 else 's60'} offen offset:{(k&3)*1024} sc1" for k in range(6)]
    poll("L_G2POLL", lds_, [W + 4*k + 1 for k in range(6)] + [W + 4*k + 3 for k in range(6)], 8, sleep=64, pre=g2pre)
    def sum_pairs(n):
        for k in range(1, n):
            A(f"v_add_f32 v{W}, v{W}, v{W+4*k}"); A(f"v_add_f32 v{W+2}, v{W+2}, v{W+4*k+2}")
        A("s_nop 1")
        A(f"v_permlane16_swap_b32 v{W}, v{W+2}")
        A(f"v_add_f32 v{W}, v{W}, v{W+2}")
        A(f"v_mov_b32 v{W+2}, v{W}"); A("s_nop 1")
        A(f"v_permlane32_swap_b32 v{W+2}, v{W}")
        A(f"v_add_f32 v{W}, v{W}, v{W+2}")
        rne(W)
    sum_pairs(6)
    A(f"v_mul_f32 v21, 0x{LOG2E ^ 0x80000000:08x}, v{W}")
    A("v_exp_f32 v21, v21"); A("s_nop 0")
    A("v_add_f32 v21, 1.0, v21")
    A("v_rcp_f32 v21, v21"); A("s_nop 0")
    A(f"v_mul_f32 v94, v{W}, v21")
    rne(94)
    A("v_lshlrev_b32 v93, 16, v93")
    A("s_lshl_b32 s53, s55, 13"); A(f"s_add_u32 s53, s53, {E2_OFF}"); A("s_add_u32 s60, s53, 4096")
    stamp(2)
    A("s_barrier")
    A("s_barrier")
    stamp(4)
    lds_ = [f"buffer_load_dwordx4 v[{W+4*k}:{W+4*k+3}], v19, s[32:35], {'s53' if k < 4 else 's60'} offen offset:{(k&3)*1024} sc1" for k in range(8)]
    poll("L_E2POLL", lds_, [W + 4*k + 1 for k in range(8)] + [W + 4*k + 3 for k in range(8)], 8)
    sum_pairs(8)
    A(f"v_mul_f32 v{W}, v{W}, v94")
    rne(W)
    A(f"v_add_f32 v{W}, v{W}, v93")
    A(f"v_cvt_pk_bf16_f32 v{W}, v{W}, v{W}")
    A("s_mov_b32 exec_hi, 0")
    A(f"global_store_short v92, v{W}, s[22:23]")
    A("s_cmp_eq_u32 s55, 0")
    A("s_cbranch_scc0 L_fin")
    A("s_mov_b32 exec_lo, 1")
    A("v_mov_b32 v21, s31"); A(f"v_mov_b32 v22, {GEN_OFF}")
    A("buffer_store_dword v21, v22, s[32:35], 0 offen")
    A("s_branch L_fin")
    LB("L_H2_IDLE")
    A("s_barrier"); A("s_barrier")
    A("s_branch L_fin")
    LB("L_H0")
    if Z:
        A("s_lshl_b32 s61, s30, 5"); A("s_add_u32 s61, s61, s28")
        A("s_and_b32 s48, s29, 3"); A("s_cmp_lg_u32 s48, 0"); A("s_cbranch_scc1 L_H0_NI")
        A("s_lshl_b32 s48, s61, 7"); A(f"s_add_u32 s48, s48, {CNT_OFF}")
        A("v_mov_b32 v21, 0")
        A("s_mov_b64 exec, 1")
        A("buffer_store_dword v21, v21, s[32:35], s48 offen sc1")
        A("s_mov_b64 exec, -1")
        LB("L_H0_NI")
    A("v_and_b32 v21, 3, v0"); A("v_lshlrev_b32 v21, 4, v21")
    A("s_mov_b32 s50, 0")
    LB("L_MLPOLL")
    A("s_sleep 8")
    A(f"ds_read_b128 v[24:27], v21 offset:{L_ML}")
    A("s_add_u32 s50, s50, 1")
    A("s_waitcnt lgkmcnt(0)")
    A("v_cmp_eq_u32 vcc, 0, v26")
    A("s_cmp_gt_u32 s50, 0x40000")
    A("s_cbranch_scc1 L_MLPOLL_x")
    A("s_cbranch_vccnz L_MLPOLL")
    LB("L_MLPOLL_x")
    def quad(op, d, s):
        A(f"{op}_dpp v{d}, v{s}, v{s} quad_perm:[1,0,3,2] {DPPF}"); A("s_nop 1")
        A(f"{op}_dpp v{d}, v{d}, v{d} quad_perm:[2,3,0,1] {DPPF}")
    quad("v_max_f32", 28, 24)
    A("v_sub_f32 v24, v24, v28"); A(f"v_mul_f32 v24, 0x{LOG2E:08x}, v24"); A("v_exp_f32 v24, v24"); A("s_nop 0")
    A("v_mul_f32 v25, v24, v25"); A("s_nop 1")
    quad("v_add_f32", 29, 25)
    A("s_getreg_b32 s57, hwreg(HW_REG_XCC_ID)"); A("s_and_b32 s57, s57, 15")
    A("v_mov_b32 v32, v28"); A("v_mov_b32 v33, v29"); A("v_mov_b32 v34, s57"); A("v_mov_b32 v35, s31")
    A("s_lshl_b32 s53, s28, 10"); A(f"s_add_u32 s53, s53, {LX_OFF}")
    A("s_lshl_b32 s54, s29, 7"); A("s_add_u32 s54, s54, s53")
    A("s_waitcnt vmcnt(0)")
    A("s_mov_b64 exec, 0xff")
    A("buffer_store_dwordx4 v[32:35], v19, s[32:35], s54 offen sc1")
    A("s_mov_b64 exec, -1")
    A("v_and_b32 v22, 7, v0"); A("v_lshlrev_b32 v22, 7, v22")
    poll("L_LXPOLL", ["buffer_load_dwordx4 v[36:39], v22, s[32:35], s53 offen sc1"], [39], 8, sleep=32, pre=lxpre)
    quad("v_max_f32", 28, 36)
    A("v_cmp_ne_u32 vcc, s57, v38")
    A("v_sub_f32 v36, v36, v28"); A(f"v_mul_f32 v36, 0x{LOG2E:08x}, v36")
    A("v_exp_f32 v36, v36"); A("s_lshl_b32 s60, s30, 2")
    A("v_mul_f32 v36, v36, v37"); A("s_nop 1")
    quad("v_add_f32", 29, 36)
    A("v_readlane_b32 s48, v28, s60"); A("v_readlane_b32 s49, v29, s60")
    A("s_cmp_eq_u64 vcc, 0"); A("s_cselect_b32 s57, 1, 0")
    A("v_subrev_f32 v32, s48, v32"); A("v_rcp_f32 v29, s49")
    A(f"v_mul_f32 v32, 0x{LOG2E:08x}, v32")
    A("v_exp_f32 v32, v32"); A("v_mul_f32 v24, v24, v29")
    A("v_mul_f32 v24, v24, v32"); A("s_nop 1")
    if fast: assert amap == omap and not Z
    if Z: A("v_lshlrev_b32 v21, 3, v21")
    if Z:
        A("v_mov_b32 v25, 1")
        A("v_lshrrev_b32 v21, 4, v21")
        A(f"ds_write_b64 v21, v[24:25] offset:{L_W}")
        A("v_lshrrev_b32 v21, 4, v0"); A("v_lshlrev_b32 v21, 3, v21")
        A(f"ds_read_b32 v26, v21 offset:{L_W}")
        A("v_lshlrev_b32 v21, 2, v0")
        for z in range(Z): A(f"ds_read_b32 v{40+2*z}, v21 offset:{L_PP + 256*z}")
        A(f"s_mul_i32 s53, s61, {96*128}"); A(f"s_add_u32 s53, s53, {PX_OFF}")
        A("s_and_b32 s48, s29, 3"); A("s_lshl_b32 s48, s48, 9"); A("s_add_u32 s53, s53, s48")
        A("v_lshlrev_b32 v21, 3, v0")
        A("s_waitcnt lgkmcnt(0)")
        for z in range(Z):
            A(f"v_mul_f32 v{40+2*z}, v{40+2*z}, v26")
            A(f"v_cvt_pk_bf16_f32 v{40+2*z}, v{40+2*z}, v{40+2*z}")
            A(f"v_mov_b32 v{41+2*z}, s31")
            A(f"buffer_store_dwordx2 v[{40+2*z}:{41+2*z}], v21, s[32:35], s53 offen sc1")
            if z < Z - 1: A("s_add_u32 s53, s53, 2048")
    else:
        for s in range(4):
            A(f"v_mov_b32_dpp v{28+s}, v24 quad_perm:[{s},{s},{s},{s}] {DPPF}")
    A("v_lshlrev_b32 v21, 2, v0")
    A("s_lshl_b32 s54, s28, 13"); A(f"s_add_u32 s54, s54, {E1_OFF}"); A("s_lshl_b32 s53, s29, 10"); A("s_add_u32 s54, s54, s53")
    A("v_mov_b32 v35, s31")
    A("s_mov_b32 s55, 4")
    stamp(2)
    A("s_barrier")
    stamp(3)
    if fast: A("s_cmp_eq_u32 s57, 1")
    po = L_PART // 256
    assert L_PART % 256 == 0
    for m in range(12):
        A(f"ds_read2st64_b32 v[{40+2*m}:{41+2*m}], v21 offset0:{po+2*m} offset1:{po+2*m+1}")
    for e in range(24):
        k, i = divmod(e, 3)
        if e % 6 == 0: A(f"s_waitcnt lgkmcnt({9 - 3*(e//6)})")
        if Z:
            if k == 1: A(f"v_add_f32 v{32+i}, v{40+i}, v{40+e}")
            elif k > 1: A(f"v_add_f32 v{32+i}, v{32+i}, v{40+e}")
        elif k == 0: A(f"v_mul_f32 v{32+i}, v28, v{40+e}")
        else: A(f"v_fmac_f32 v{32+i}, v{28 + k//2}, v{40+e}")
    if fast:
        A("s_cbranch_scc1 L_E1_FAST")
    A("buffer_store_dwordx4 v[32:35], v19, s[32:35], s54 offen sc1")
    A("s_branch L_WO_PRE")
    if fast:
        LB("L_E1_FAST")
        A("buffer_store_dwordx4 v[32:35], v19, s[32:35], s54 offen")
        A("s_branch L_WO_PRE")

    LB("L_STREAM")
    A(f"s_load_dword s31, s[26:27], {GEN_OFF}")
    for idx in range(WIN, 12): issue(idx)
    srd(40, 8, 100663296); srd(44, 12, 6144 * 640 * 2); srd(32, 26, WS_BYTES)
    wgmap(omap, 58, 59)
    A("v_bfe_u32 v4, v0, 3, 1"); A("v_lshrrev_b32 v5, 4, v0"); A("v_lshl_add_u32 v4, v4, 3, v5")
    A("v_mul_u32_u24 v2, 384, v4"); A("v_and_b32 v5, 7, v0"); A("v_lshl_add_u32 v2, v5, 4, v2")
    A("v_mul_u32_u24 v76, 6554, v0"); A("v_lshrrev_b32 v76, 16, v76")
    A("v_mul_u32_u24 v5, 10, v76"); A("v_sub_u32 v5, v0, v5")
    A("v_mul_u32_u24 v76, 1280, v76"); A("v_lshl_add_u32 v76, v5, 4, v76")
    A("s_mul_i32 s54, s58, 192"); A("s_mul_i32 s48, s55, 48"); A("s_add_u32 s54, s54, s48"); A("s_mul_i32 s54, s54, 1280")
    A("s_mul_i32 s48, s59, 160"); A("s_add_u32 s54, s54, s48")
    A(f"s_mul_i32 s56, s55, 7680"); A(f"s_add_u32 s56, s56, {L_WO}")
    A("v_lshrrev_b32 v5, 5, v0"); A("v_mul_u32_u24 v77, 768, v5"); A("v_and_b32 v5, 7, v0"); A("v_lshl_add_u32 v77, v5, 5, v77")
    A("v_bfe_u32 v5, v0, 4, 1"); A("v_lshl_add_u32 v77, v5, 4, v77")
    A("s_mul_i32 s48, s55, 1536"); A("v_add_u32 v77, s48, v77")
    amasks(4, 78)
    if Z:
        A("s_lshl_b32 s61, s30, 5"); A("s_add_u32 s61, s61, s28")
        A("s_lshl_b32 s60, s61, 7"); A(f"s_add_u32 s60, s60, {CNT_OFF}")
        A(f"s_mul_i32 s62, s61, {96*128}"); A(f"s_add_u32 s62, s62, {PX_OFF}")
        A(f"s_mul_i32 s61, s61, 1572864"); A(f"s_add_u32 s61, s61, {NS*6144}")
    BQ = 28
    for r in range(24): A(f"v_mov_b32 v{BQ+r}, 0")
    A("v_mov_b32 v79, 0xff800000")
    for idx in range(12, R): issue(idx)
    stamp(1)
    A("s_barrier")
    A("s_mov_b32 exec_lo, 0x000f000f"); A("s_mov_b32 exec_hi, 0x00f000f0")
    for i in range(3): A(f"ds_read_b128 v[{BQ+4*i}:{BQ+4*i+3}], v3 offset:{L_Q + 128*i}")
    A("s_mov_b32 exec_lo, 0x0f000f00"); A("s_mov_b32 exec_hi, 0xf000f000")
    for i in range(3): A(f"ds_read_b128 v[{BQ+12+4*i}:{BQ+12+4*i+3}], v3 offset:{L_Q + 128*i}")
    A("s_mov_b64 exec, -1")
    A("s_waitcnt lgkmcnt(0)")
    A(f"s_add_u32 s31, s31, 0x{TAGC:08x}")
    stamp(2)
    S = 52
    def extract(t):
        a = 8 + 4 * (t & 1)
        v = S + t
        A(f"v_mov_b32_dpp v{v}, v{a} quad_perm:[0,0,0,0] {DPPF}")
        for k in (1, 2, 3):
            A(f"v_add_f32_dpp v{v}, v{a+k}, v{v} quad_perm:[{k},{k},{k},{k}] {DPPF}")
        rne(v)
        A(f"v_mul_f32 v{v}, 0x{SCALE:08x}, v{v}")
        rne(v)
        A(f"v_max_f32 v79, v79, v{v}")
    n = len(loads)
    def pexp(t):
        v = S + t
        A(f"v_sub_f32 v{v}, v{v}, v79")
        A(f"v_mul_f32 v{v}, 0x{LOG2E:08x}, v{v}")
        A(f"v_exp_f32 v{v}, v{v}")
        A("s_nop 0")
        if t == 0: A(f"v_mov_b32 v80, v{v}")
        else: A(f"v_add_f32 v80, v80, v{v}")
        if not Z or t < NS - 1: A(f"v_cvt_pk_bf16_f32 v{v}, v{v}, v{v}")
    def abuildv(p):
        A(f"v_and_b32 v68, v{p}, v4"); A(f"v_and_b32 v69, v{p}, v5")
        A(f"v_and_b32_dpp v70, v{p}, v6 row_half_mirror {DPPF}"); A(f"v_and_b32_dpp v71, v{p}, v7 row_half_mirror {DPPF}")
        A(f"v_and_b32_dpp v72, v{p}, v4 row_half_mirror {DPPF}"); A(f"v_and_b32_dpp v73, v{p}, v5 row_half_mirror {DPPF}")
        A(f"v_and_b32 v74, v{p}, v6"); A(f"v_and_b32 v75, v{p}, v7")
    def target(idx):
        fl = LK if idx < 96 else WIN
        if SPN and idx >= len(loads) - SPN - SPW: fl = SPW
        return max(fl, R - max(0, idx - WIN + 1) // 2)
    ncons = n - 6 if Z else n
    for idx in range(ncons):
        ten, t, s, i = loads[idx]
        r = slot(idx)
        if ten == "V" and s == 0 and i == 0:
            if t == 0:
                A("s_nop 7")
                extract(15)
                A("s_nop 1")
                A(f"v_max_f32_dpp v79, v79, v79 row_half_mirror {DPPF}"); A("s_nop 1")
                A(f"v_max_f32_dpp v79, v79, v79 row_mirror {DPPF}")
                xrow_reduce("v_max_f32", 79, 80)
                pexp(0)
                stamp(3)
                A("s_nop 0")
            abuildv(S + t)
        after = issued[0] - pos[idx] - 1
        if after < max(WIN, SPW if SPN else 0): A(f"s_waitcnt vmcnt({after})")
        elif ten == "V" and s == 0 and i == 0: A("s_nop 0")
        if ten == "K":
            mf(8 + 4 * (t & 1), r, BQ + 12 * s + 4 * i, s == 0 and i == 0)
        else:
            mf(16 + 4 * i, 68 + 4 * s, r, t == 0 and s == 0)
        tail_d = [p for p in range(NTOT) if ops[p][0] != "L" and p < len(ops) - (8 - nd if (not Z and not woh) else 0)]
        def ahead():
            return issued[0] - pos[idx] - sum(1 for p in tail_d if pos[idx] < p < issued[0] and ops[p][0] == "D")
        while issued[0] < NTOT and ahead() <= target(idx) and issued[0] - R <= idx:
            issue(issued[0])
        if ten == "K" and s == 1 and i == 2 and t > 0:
            A("s_nop 1")
            extract(t - 1)
        vi = idx - 96
        if not Z and vi == chk * 6 - 1: stamp(6)
        if 0 <= vi < 15:
            pexp(vi + 1)
        if vi == 15:
            A(f"v_add_f32_dpp v80, v80, v80 row_half_mirror {DPPF}"); A("s_nop 1")
            A(f"v_add_f32_dpp v80, v80, v80 row_mirror {DPPF}")
            xrow_reduce("v_add_f32", 80, 81)
            if Z:
                A("v_bfe_u32 v14, v0, 2, 2"); A("v_lshrrev_b32 v15, 4, v0"); A("v_lshl_add_u32 v14, v14, 2, v15")
                A("s_lshl_b32 s48, s55, 6"); A("v_lshl_add_u32 v15, v14, 2, s48")
                A("v_lshlrev_b32 v14, 3, v14")
                A("v_mov_b32 v13, 0")
                for z in range(Z): A(f"ds_write_b32 v15, v{S+NS+z} offset:{L_PP + 256*z}")
            A("v_mov_b32 v8, v79"); A("v_mov_b32 v9, v80"); A("v_mov_b32 v10, 1"); A("v_mov_b32 v11, 1")
            A("s_lshl_b32 s48, s55, 4"); A("v_mov_b32 v81, s48")
            A(f"ds_write_b128 v81, v[8:11] offset:{L_ML}")
            if Z: A("v_lshrrev_b32 v81, 1, v81")
    if Z:
        while issued[0] < NTOT: issue(issued[0])
        if stamps: A("s_mov_b64 s[68:69], s[64:65]")
        A(f"v_mul_f32 v{PB}, v{S+NS-1}, v82")
        A(f"v_mov_b32 v{PB+1}, s31")
        A(f"v_cvt_pk_bf16_f32 v{PB}, v{PB}, v{PB}")
        A("s_nop 3")
        for k in range(12): A(f"v_mul_f32 v{16+k}, v{16+k}, v82")
        def pcheck(lab, P, sreg):
            A(f"v_cmp_ne_u32 vcc, s31, v{P+1}")
            A(f"s_cbranch_vccz {lab}_ok")
            A("s_mov_b32 s50, 0")
            LB(lab + "_r")
            A("s_sleep 4")
            A(f"buffer_load_dwordx2 v[{P}:{P+1}], v14, s[32:35], {sreg} offen sc1")
            A("s_add_u32 s50, s50, 1")
            A("s_waitcnt vmcnt(0)")
            A(f"v_cmp_ne_u32 vcc, s31, v{P+1}")
            A("s_cmp_gt_u32 s50, 0x40000")
            A(f"s_cbranch_scc1 {lab}_ok")
            A(f"s_cbranch_vccnz {lab}_r")
            LB(lab + "_ok")
        def half(nm, X, PX_, sx, Y, PY, sy, flag):
            LB(nm)
            A("s_waitcnt vmcnt(7)")
            A(f"v_readfirstlane_b32 s48, v{TK}")
            A(f"s_mov_b32 s63, {flag}")
            A(f"s_cmp_ge_u32 s48, {NP}")
            A("s_cbranch_scc1 L_DEXIT")
            claim()
            if stamps: A("s_add_u32 s68, s68, 100"); A("s_addc_u32 s69, s69, 0")
            A(f"s_lshl_b32 {sx}, s48, 7"); A(f"s_add_u32 {sx}, {sx}, s62")
            A("s_and_b32 s49, s48, 15"); A("s_mul_i32 s49, s49, 98304"); A("s_lshr_b32 s48, s48, 4"); A("s_mul_i32 s48, s48, 6144")
            A("s_add_u32 s53, s49, s48"); A("s_add_u32 s53, s53, s61")
            A("s_waitcnt vmcnt(7)")
            pcheck(nm + "_p", PY, sy)
            A(f"buffer_load_dwordx2 v[{PX_}:{PX_+1}], v14, s[32:35], {sx} offen sc1")
            abuildv(PY)
            for k in range(6):
                sg, i = divmod(k, 3)
                A("s_waitcnt vmcnt(7)")
                mf(16 + 4 * i, 68 + 4 * sg, Y + 4 * k, False)
                A(f"buffer_load_dwordx4 v[{X+4*k}:{X+4*k+3}], v2, s[40:43], s53 offen offset:{sg*1536 + i*128} {vf}")
        half("L_DA", SETA, PA, "s51", SETB, PB, "s52", 0)
        half("L_DB", SETB, PB, "s52", SETA, PA, "s51", 1)
        A("s_branch L_DA")
        LB("L_DEXIT")
        if not woh:
            for k in range(8): dma(k)
        DX = 0 if woh else 8
        A("s_cmp_eq_u32 s63, 0")
        A("s_cbranch_scc1 L_DRB")
        def drain(nm, Y, PY, sy):
            LB(nm)
            A(f"s_waitcnt vmcnt({6+DX})")
            pcheck(nm + "_p", PY, sy)
            abuildv(PY)
            for k in range(6):
                sg, i = divmod(k, 3)
                A(f"s_waitcnt vmcnt({5+DX-k})")
                mf(16 + 4 * i, 68 + 4 * sg, Y + 4 * k, False)
        drain("L_DRA", SETA, PA, "s51")
        A("s_branch L_DEND")
        drain("L_DRB", SETB, PB, "s52")
        LB("L_DEND")
    A("s_mov_b32 exec_lo, 0x00ff00ff"); A("s_mov_b32 exec_hi, 0xff00ff00")
    A("s_nop 5")
    for i in range(3):
        A(f"ds_write_b128 v77, v[{16+4*i}:{19+4*i}] offset:{L_PART + 256*i}")
    A("s_mov_b64 exec, -1")
    while issued[0] < NTOT: issue(issued[0], nowait=True)
    A("s_waitcnt lgkmcnt(0)")
    stamp(4)
    A("s_barrier")
    LB("L_WO_PRE")
    A("v_bfe_u32 v1, v0, 1, 1"); A("v_mul_u32_u24 v1, 384, v1"); A("v_lshrrev_b32 v2, 4, v0"); A("v_lshl_add_u32 v1, v2, 4, v1")
    A("v_lshrrev_b32 v2, 2, v0"); A("v_mul_u32_u24 v2, 160, v2")
    A("v_and_b32 v3, 3, v0"); A("v_lshl_add_u32 v2, v3, 3, v2")
    A("s_lshl_b32 s48, s55, 5"); A("v_add_u32 v2, s48, v2")
    A("v_lshlrev_b32 v3, 4, v0")
    A("s_mul_i32 s48, s59, 5"); A("s_add_u32 s48, s48, s55"); A("s_lshl_b32 s48, s48, 5"); A("s_add_u32 s48, s48, s58")
    A("s_lshl_b32 s48, s48, 8"); A(f"s_add_u32 s48, s48, {E2_OFF}")
    A("s_cmp_eq_u32 s55, 4")
    A("s_cbranch_scc1 L_WO_B3")
    A("s_waitcnt vmcnt(0)")
    LB("L_WO_B3")
    stamp(5)
    A("s_barrier")
    for s in range(6):
        A(f"ds_read_b128 v[{96+8*s}:{99+8*s}], v1 offset:{L_OBF + 64*s}")
        A(f"ds_read_b64_tr_b16 v[{100+8*s}:{101+8*s}], v2 offset:{L_WO + 5120*s}")
        A(f"ds_read_b64_tr_b16 v[{102+8*s}:{103+8*s}], v2 offset:{L_WO + 5120*s + 2560}")
    for s in range(6):
        A(f"s_waitcnt lgkmcnt({min(15, 3*(5-s))})")
        mf(8, 96 + 8*s, 100 + 8*s, s == 0)
    A("s_mov_b32 exec_lo, 0xffff"); A("s_mov_b32 exec_hi, 0")
    A("s_nop 5")
    A("v_mov_b32 v9, s31"); A("v_mov_b32 v11, s31")
    A("buffer_store_dwordx4 v[8:11], v3, s[32:35], s48 offen sc1")
    LB("L_fin")
    if stamps:
        stamp(7)
        A("s_mov_b64 exec, 1")
        A("s_waitcnt lgkmcnt(0)")
        A("s_lshl_b32 s48, s2, 3"); A("s_add_u32 s48, s48, s3"); A("s_lshl_b32 s48, s48, 6"); A(f"s_add_u32 s48, s48, {STAMP_OFF}")
        A("v_mov_b32 v1, 0")
        for q in range(4):
            for k in range(4): A(f"v_mov_b32 v{4+k}, s{64+4*q+k}")
            A(f"buffer_store_dwordx4 v[4:7], v1, s[32:35], s48 offen offset:{16*q}")
            A("s_nop 1")
    LB("L_end")
    A("s_endpgm")
    L.append('.section .rodata,"a"'); L.append(".p2align 6"); L.append(f".amdhsa_kernel {KNAME}")
    for d in ["next_free_vgpr 256", "next_free_sgpr 96", "accum_offset 256", "group_segment_fixed_size 0", "kernarg_size 96",
              "user_sgpr_count 2", "user_sgpr_kernarg_segment_ptr 1", "system_sgpr_workgroup_id_x 1", "float_denorm_mode_32 3"]:
        L.append("  .amdhsa_" + d)
    L.append(".end_amdhsa_kernel")
    return "\n".join(L) + "\n"

if __name__ == "__main__":
    ap = argparse.ArgumentParser()
    ap.add_argument("-o", default="k.s")
    ap.add_argument("--R", type=int, default=42)
    ap.add_argument("--amap", default="mix")
    ap.add_argument("--Z", type=int, default=3)
    ap.add_argument("--nd", type=int, default=0)
    ap.add_argument("--nv", type=int, default=0)
    ap.add_argument("--fast", type=int, default=0)
    ap.add_argument("--woh", type=int, default=0)
    ap.add_argument("--wopre", type=int, default=0)
    ap.add_argument("--SPN", type=int, default=0)
    ap.add_argument("--SPW", type=int, default=10)
    ap.add_argument("--chk", type=int, default=9)
    ap.add_argument("--lxpre", type=int, default=60)
    ap.add_argument("--qmap", default="xcd")
    ap.add_argument("--g1sh", type=int, default=1)
    ap.add_argument("--g1pre", type=int, default=300)
    ap.add_argument("--omap", default="xcd")
    ap.add_argument("--stamps", action="store_true")
    ap.add_argument("--wo", default="nt")
    ap.add_argument("--w", default="nt")
    ap.add_argument("--WIN", type=int, default=5)
    ap.add_argument("--LK", type=int, default=10)
    ap.add_argument("--qsleep", type=int, default=60)
    ap.add_argument("--dbg", default="")
    ap.add_argument("--HW", type=int, default=4)
    ap.add_argument("--g2pre", type=int, default=480)
    ap.add_argument("--kf", default="nt")
    ap.add_argument("--vf", default="nt")
    a = ap.parse_args()
    open(a.o, "w").write(gen(R=a.R, nd=a.nd, nv=a.nv, fast=a.fast, woh=a.woh, wopre=a.wopre, SPN=a.SPN, SPW=a.SPW, chk=a.chk, Z=a.Z, lxpre=a.lxpre, HW=a.HW, g2pre=a.g2pre, qmap=a.qmap, g1sh=a.g1sh, g1pre=a.g1pre, amap=a.amap, omap=a.omap, stamps=a.stamps, wo_flags=a.wo, w_flags=a.w, WIN=a.WIN, LK=a.LK,
                             qsleep=a.qsleep, dbg=tuple(a.dbg.split(',')), kf=a.kf.replace('+', ' '), vf=a.vf.replace('+', ' ')))
```

```python
import sys, argparse
KNAME = "recurrent_scan__gqa_block_cached__glu_gated_bilinear__decode_kernel"
HEADER = open("recurrent_scan__gqa_block_cached__glu_gated_bilinear__decode.s.ref").read().split("; Override launch")[0]

GEN_OFF = 0
LX_OFF = 4096
QS_OFF = LX_OFF + 256 * 128
E1_OFF = QS_OFF + 32 * 3 * 8192
E2_OFF = E1_OFF + 256 * 1024
G1_OFF = E2_OFF + 40 * 32 * 256
G2_OFF = G1_OFF + 24 * 10 * 2048
CNT_OFF = G2_OFF + 40 * 24 * 256
PX_OFF = CNT_OFF + 64 * 128
WS_USED = PX_OFF + 64 * 96 * 128
STAMP_OFF = 4 << 20
WS_BYTES = 402653184
L_XN = 0
L_Q = 2048
L_ML = 2432
L_W = 2496
L_PRG = 2528
L_MODE = 2532
L_OBF = 2560
L_HS = 3328
L_PART = 3840
L_PP = 9984
L_WO = 11520
LDS_BYTES = L_WO + 30720
TAGC = 0x9E3779B1
LOG2E = 0x3FB8AA3B
SCALE = 0x3D93CD3A
DPPF = "row_mask:0xf bank_mask:0xf"

def gen(R=42, amap="xcd", omap="xcd1", qmap="xcd7", g1sh=1, g2sh=0, g1pre=120, lxpre=100, stamps=False, wo_flags="nt", w_flags="nt", red_base=216, WIN=5, HW=4, LK=10, g2pre=480,
        qsleep=40, dbg=(), kf='nt', vf='nt', Z=3, chk=9, woh=0, wopre=0, SPN=0, SPW=10, fast=0, nd=0, nv=0, WK=0, WKa=0, WKb=0, ctl=0, WH=7, WL=4, MS=(48, 78, 108, 132, 156), tf=160, ts=96):
    L = []
    A = lambda s: L.append("  " + s)
    LB = lambda s: L.append(s + ":")
    C = lambda s: L.append("  ; " + s)
    def stamp(k):
        if stamps:
            A(f"s_memrealtime s[{64+2*k}:{65+2*k}]")
    def srd(d, plo, size):
        A(f"s_mov_b32 s{d}, s{plo}"); A(f"s_mov_b32 s{d+1}, s{plo+1}")
        A(f"s_mov_b32 s{d+2}, {size}"); A(f"s_mov_b32 s{d+3}, 0x20000")
    def amasks(base, tmp):
        A(f"v_and_b32 v{tmp}, 1, v0")
        A(f"v_lshlrev_b32 v{tmp}, 4, v{tmp}")
        A("s_mov_b32 s48, 0xffff")
        A(f"v_lshlrev_b32_e64 v{tmp}, v{tmp}, s48")
        for r in range(4):
            A(f"s_mov_b32 s48, 0x{0x03030303 << (2*r):08x}")
            A("s_mov_b32 s49, s48")
            A(f"v_cndmask_b32_e64 v{base+r}, 0, v{tmp}, s[48:49]")
    def xrow_reduce(op, v, t):
        A(f"v_mov_b32 v{t}, v{v}"); A("s_nop 1")
        A(f"v_permlane16_swap_b32 v{t}, v{v}")
        A(f"{op} v{v}, v{v}, v{t}")
        A(f"v_mov_b32 v{t}, v{v}"); A("s_nop 1")
        A(f"v_permlane32_swap_b32 v{t}, v{v}")
        A(f"{op} v{v}, v{v}, v{t}")
    def rne(v):
        A(f"v_cvt_pk_bf16_f32 v{v}, v{v}, v{v}")
        A(f"v_and_b32 v{v}, 0xffff0000, v{v}")
    def epilogue(P, Q, G, kind):
        for a in (P, Q, P + 1, Q + 1):
            A(f"v_permlane32_swap_b32 v{a}, v{a+2}")
        A(f"v_mov_b32 v{G+1}, s31"); A(f"v_mov_b32 v{G+3}, s31")
        lo = lambda d, x: A(f"v_add_f32_dpp v{d}, v{x+2}, v{x} row_shl:8 {DPPF}")
        hi = lambda d, x: A(f"v_add_f32_dpp v{d}, v{x}, v{x+2} row_shr:8 {DPPF}")
        if kind == "b":
            lo(G, P); lo(G + 2, P + 1); hi(G, Q); hi(G + 2, Q + 1)
        else:
            lo(G, P); lo(G + 2, Q); hi(G, P + 1); hi(G + 2, Q + 1)
    def poll(label, loads, tagregs, tmp, sleep=0, pre=0):
        while pre > 0:
            A(f"s_sleep {min(pre, 127)}"); pre -= 127
        if label in dbg:
            for ld in loads: A(ld)
            A("s_waitcnt vmcnt(0)")
            return
        A("s_mov_b32 s50, 0")
        LB(label)
        for ld in loads: A(ld)
        A("s_add_u32 s50, s50, 1")
        A("s_waitcnt vmcnt(0)")
        A(f"v_xor_b32 v{tmp}, s31, v{tagregs[0]}")
        rest = list(tagregs[1:])
        while rest:
            if len(rest) >= 2:
                A(f"v_xor_b32 v{tmp+1}, s31, v{rest[0]}"); A(f"v_xor_b32 v{tmp+2}, s31, v{rest[1]}")
                A(f"v_or3_b32 v{tmp}, v{tmp}, v{tmp+1}, v{tmp+2}"); rest = rest[2:]
            else:
                A(f"v_xor_b32 v{tmp+1}, s31, v{rest[0]}"); A(f"v_or_b32 v{tmp}, v{tmp}, v{tmp+1}"); rest = rest[1:]
        A(f"v_cmp_ne_u32 vcc, 0, v{tmp}")
        A("s_cmp_gt_u32 s50, 0x40000")
        A(f"s_cbranch_scc1 {label}_x")
        if sleep:
            A(f"s_cbranch_vccz {label}_x")
            A(f"s_sleep {sleep}")
            A(f"s_branch {label}")
        else:
            A(f"s_cbranch_vccnz {label}")
        LB(label + "_x")
    def wgmap(kind, sh, sj):
        if kind == "mix":
            A("s_bfe_u32 s48, s2, 0x20001")
            A("s_lshr_b32 s49, s2, 3"); A(f"s_lshl_b32 s{sh}, s48, 3"); A(f"s_sub_u32 s{sh}, s49, s{sh}"); A(f"s_and_b32 s{sh}, s{sh}, 31")
            A(f"s_and_b32 s{sj}, s2, 1"); A(f"s_lshl2_add_u32 s{sj}, s{sj}, s48")
        elif kind.startswith("xcd"):
            k = int(kind[3:] or 0)
            if k:
                A(f"s_add_u32 s48, s2, {k}"); A("s_and_b32 s48, s48, 7")
            else:
                A("s_and_b32 s48, s2, 7")
            A("s_lshr_b32 s49, s2, 3"); A(f"s_lshr_b32 s{sh}, s49, 3")
            A(f"s_lshl2_add_u32 s{sh}, s48, s{sh}"); A(f"s_and_b32 s{sj}, s49, 7")
        else:
            A(f"s_lshr_b32 s{sh}, s2, 3"); A(f"s_and_b32 s{sj}, s2, 7")
    mf = lambda d, a, b, first: A(f"v_mfma_f32_16x16x32_bf16 v[{d}:{d+3}], v[{a}:{a+3}], v[{b}:{b+3}], {'0' if first else f'v[{d}:{d+3}]'}")

    L.append(HEADER.rstrip("\n"))
    L.append(f"; @launch grid=(256,1,1) block=(512,1,1) lds={LDS_BYTES}")
    L.append('.amdgcn_target "amdgcn-amd-amdhsa--gfx950"')
    L.append(".text"); L.append(f".globl {KNAME}"); L.append(".p2align 8"); L.append(f".type {KNAME},@function")
    LB(KNAME)
    A("s_cmp_ge_u32 s2, 256")
    A("s_cbranch_scc1 L_end")
    stamp(0)
    A("s_load_dwordx16 s[4:19], s[0:1], 0")
    A("s_load_dwordx8 s[20:27], s[0:1], 64")
    A("v_lshrrev_b32 v1, 6, v0")
    A("v_and_b32 v0, 63, v0")
    A("v_readfirstlane_b32 s3, v1")
    wgmap(amap, 28, 29)
    A("s_lshr_b32 s30, s29, 2")
    A("s_cmp_lt_u32 s3, 4")
    A("s_cbranch_scc1 L_HELP")
    RB = 84
    NS = 16 - Z
    NP = 16 * Z
    SETA, SETB, PA, PB, TK = 84, 28, 8, 10, 12
    loads = []
    for ten in ("K", "V"):
        for t in range(16 if ten == "K" else NS):
            for s in range(2):
                for i in range(3):
                    loads.append((ten, t, s, i))
    ops = [("L", k) for k in range(len(loads))]
    if Z:
        ops.insert(len(ops) - 7, ("A", 0))
    elif not woh:
        ops += [("D", k) for k in range(nd, 8)]
        for k in range(nd):
            ops.insert(len(loads) - nv + k, ("D", k))
    pos = {k: p for p, (kind, k) in enumerate(ops) if kind == "L"}
    def slot(k):
        if Z and k >= len(loads) - 6: return SETB + 4 * (k - (len(loads) - 6))
        return RB + 4 * (k % R)
    issued = [0]
    ctl_on = [False]
    def setflags():
        if ctl and ctl_on[0]:
            A("s_cmp_eq_u32 s57, 2")
    NTOT = len(ops)
    def winf(p):
        if WK and WKa <= p < WKb: return WK
        return SPW if (SPN and p >= len(loads) - SPN) else WIN
    def dma(k):
        A("s_mov_b32 exec_hi, 0x0fffffff")
        A(f"s_add_u32 m0, s56, {960*k}")
        if k: A("s_add_u32 s54, s54, 7680")
        else: A("s_nop 0")
        if "nowo" not in dbg: A(f"buffer_load_dwordx4 v76, s[44:47], s54 offen {wo_flags} lds")
        else: A("buffer_load_dword v78, v76, s[44:47], 0 offen")
        A("s_mov_b32 exec_hi, -1")
    def claim():
        A("s_mov_b64 exec, 1")
        A(f"v_mov_b32 v{TK}, 1")
        A(f"buffer_atomic_add v{TK}, v13, s[32:35], s60 offen sc0 sc1")
        A("s_mov_b64 exec, -1")
    def issue(p, nowait=False):
        if ctl and ctl_on[0] and p < len(loads) - SPN and not nowait:
            A(f"s_waitcnt vmcnt({WH-1})")
            A(f"s_cbranch_vccnz L_w{p}")
            A(f"s_waitcnt vmcnt({WIN-1})")
            if WL < WIN:
                A(f"s_cbranch_scc0 L_w{p}")
                A(f"s_waitcnt vmcnt({WL-1})")
            LB(f"L_w{p}")
        elif p >= WIN and not nowait: A(f"s_waitcnt vmcnt({winf(p)-1})")
        kind, idx = ops[p]
        issued[0] += 1
        if kind == "D":
            dma(idx); return
        if kind == "A":
            A("s_mov_b32 s50, 0")
            LB("L_GATE")
            A(f"ds_read_b64 v[82:83], v81 offset:{L_W}")
            A("s_add_u32 s50, s50, 1")
            A("s_waitcnt lgkmcnt(0)")
            A("v_cmp_eq_u32 vcc, 0, v83")
            A("s_cmp_gt_u32 s50, 0x40000")
            A("s_cbranch_scc1 L_GATE_x")
            A("s_cbranch_vccz L_GATE_x")
            A("s_sleep 4")
            A("s_branch L_GATE")
            LB("L_GATE_x")
            stamp(6)
            claim(); return
        ten, t, s, i = loads[idx]
        r = slot(idx)
        if ten == "K":
            A(f"buffer_load_dwordx4 v[{r}:{r+3}], v1, s[36:39], s52 offen offset:{s*3072 + i*128} {kf}")
            if s == 1 and i == 2 and t < 15:
                A("s_add_u32 s52, s52, 6144"); setflags()
        else:
            A(f"buffer_load_dwordx4 v[{r}:{r+3}], v2, s[40:43], s53 offen offset:{s*1536 + i*128} {vf}")
            if s == 1 and i == 2 and t < 15:
                A("s_add_u32 s53, s53, 6144"); setflags()
    A("s_sub_u32 s55, s3, 4")
    A("v_lshrrev_b32 v4, 5, v0"); A("v_bfe_u32 v5, v0, 2, 2"); A("v_lshl_add_u32 v4, v4, 2, v5")
    A("v_mul_u32_u24 v1, 384, v4")
    A("v_and_b32 v5, 3, v0"); A("v_bfe_u32 v6, v0, 4, 1"); A("v_lshl_add_u32 v5, v6, 2, v5")
    A("v_lshlrev_b32 v3, 4, v5")
    A("v_add_u32 v1, v1, v3")
    A("s_lshl_b32 s48, s30, 5"); A("s_add_u32 s48, s48, s28"); A("s_lshl_b32 s48, s48, 2")
    A("s_and_b32 s49, s29, 3"); A("s_add_u32 s48, s48, s49"); A("s_lshl_b32 s48, s48, 2"); A("s_add_u32 s48, s48, s55")
    A("s_mul_i32 s52, s48, 98304")
    A("s_mov_b32 s53, s52")
    A("s_mov_b32 s38, 100663296"); A("s_mov_b32 s39, 0x20000")
    A("s_waitcnt lgkmcnt(0)")
    A("s_mov_b32 s36, s6"); A("s_mov_b32 s37, s7")
    for idx in range(WIN): issue(idx)
    A("s_branch L_STREAM")

    LB("L_HELP")
    A("v_lshrrev_b32 v3, 5, v0")
    A("v_and_b32 v4, 31, v0")
    A("v_mul_u32_u24 v3, 1280, v3")
    A("v_lshl_add_u32 v1, v4, 4, v3")
    A("v_lshl_add_u32 v2, v4, 3, v3")
    A("v_lshrrev_b32 v5, 3, v0")
    A("v_and_b32 v6, 7, v0")
    A("v_lshlrev_b32 v6, 4, v6")
    wgmap(qmap, 62, 63)
    A("s_lshr_b32 s49, s2, 3")
    A("s_sub_u32 s51, s49, 15"); A("s_cmp_ge_u32 s49, 15"); A("s_cselect_b32 s49, s51, s49")
    A("s_mul_i32 s57, s49, 13108"); A("s_lshr_b32 s57, s57, 16")
    A("s_mul_i32 s52, s57, 5"); A("s_sub_u32 s52, s49, s52")
    A("s_mul_i32 s55, s63, 160"); A("s_lshl_b32 s54, s52, 8")
    A("s_cmp_eq_u32 s3, 3")
    A("s_cselect_b32 s55, s54, s55")
    A("v_mul_u32_u24 v7, 12288, v5"); A("v_add_u32 v7, v7, v6")
    A(f"s_mul_i32 s53, s63, {80*12288}"); A("s_mul_i32 s54, s62, 384"); A("s_add_u32 s53, s53, s54")
    A("s_lshl_b32 s54, s3, 7"); A("s_add_u32 s53, s53, s54")
    A("s_mov_b32 s46, 2560"); A("s_mov_b32 s47, 0x20000")
    A(f"s_mov_b32 s38, {640*6144*2}"); A("s_mov_b32 s39, 0x20000")
    A("s_waitcnt lgkmcnt(0)")
    A("s_mov_b32 s44, s4"); A("s_mov_b32 s45, s5")
    A("buffer_load_dwordx4 v[8:11], v1, s[44:47], 0 offen")
    A("buffer_load_dwordx4 v[12:15], v1, s[44:47], 0 offen offset:512")
    A("buffer_load_dwordx2 v[16:17], v2, s[44:47], 0 offen offset:1024")
    A("buffer_load_dwordx2 v[18:19], v2, s[44:47], s55 offen")
    W = 96
    A("s_mov_b32 s36, s10"); A("s_mov_b32 s37, s11")
    A("s_cmp_eq_u32 s3, 3")
    A("s_cbranch_scc1 L_LN")
    for t in range(10):
        if "nowq" in dbg: break
        A(f"buffer_load_dwordx4 v[{W+4*t}:{W+4*t+3}], v7, s[36:39], s53 offen {w_flags}")
        if t < 9: A("s_add_u32 s53, s53, 98304")
    LB("L_LN")
    A(f"s_load_dword s31, s[26:27], {GEN_OFF}")
    srd(32, 26, WS_BYTES)
    amasks(88, 20)
    A("s_cmp_eq_u32 s3, 3")
    A("s_cselect_b32 s54, 1024, 0")
    A("v_lshrrev_b32 v21, 5, v0"); A("v_lshlrev_b32 v21, 9, v21"); A("v_and_b32 v22, 1, v0"); A("v_lshl_add_u32 v21, v22, 8, v21")
    A("v_bfe_u32 v22, v0, 1, 4"); A("v_lshl_add_u32 v21, v22, 2, v21"); A("v_add_u32 v21, s54, v21")
    A("v_lshl_add_u32 v22, v5, 6, s54")
    A("v_mov_b32 v23, 0"); A("v_lshlrev_b32 v24, 2, v0"); A("v_and_b32 v24, 127, v24")
    A(f"ds_write_b32 v24, v23 offset:{L_ML}")
    A("s_cbranch_scc0 L_LN_GO")
    A("s_waitcnt vmcnt(0)")
    LB("L_LN_GO")
    A("s_waitcnt vmcnt(10)" if "nowq" not in dbg else "s_waitcnt vmcnt(0)")
    stamp(5)
    U = 24
    for k in range(10):
        A(f"v_lshlrev_b32 v{U+2*k}, 16, v{8+k}")
        A(f"v_and_b32 v{U+2*k+1}, 0xffff0000, v{8+k}")
    def half_reduce(v, t):
        for sh in (8, 4, 2, 1):
            A("s_nop 1")
            A(f"v_add_f32_dpp v{v}, v{v}, v{v} row_ror:{sh} {DPPF}")
        A(f"v_mov_b32 v{t}, v{v}"); A("s_nop 1")
        A(f"v_permlane16_swap_b32 v{t}, v{v}")
        A(f"v_add_f32 v{v}, v{v}, v{t}")
    pk = lambda r: f"v[{r}:{r+1}]"
    A(f"v_pk_add_f32 v[60:61], {pk(U)}, {pk(U+2)}")
    for k in range(2, 10): A(f"v_pk_add_f32 v[60:61], v[60:61], {pk(U+2*k)}")
    A("v_add_f32 v60, v60, v61")
    half_reduce(60, 61)
    A("v_mul_f32 v60, 0x3acccccd, v60")
    for k in range(10):
        A(f"v_pk_add_f32 {pk(U+2*k)}, {pk(U+2*k)}, v[60:61] op_sel_hi:[1,0] neg_lo:[0,1] neg_hi:[0,1]")
    A(f"v_pk_mul_f32 v[62:63], {pk(U)}, {pk(U)}")
    for k in range(1, 10): A(f"v_pk_fma_f32 v[62:63], {pk(U+2*k)}, {pk(U+2*k)}, v[62:63]")
    A("v_add_f32 v62, v62, v63")
    half_reduce(62, 63)
    A("v_mul_f32 v62, 0x3acccccd, v62")
    rne(60); rne(62)
    A("v_add_f32 v62, 0x3727c5ac, v62")
    rne(62)
    A("v_sqrt_f32 v62, v62")
    A("v_lshlrev_b32 v56, 16, v18"); A("v_and_b32 v57, 0xffff0000, v18")
    rne(62)
    A("v_rcp_f32 v62, v62")
    A("v_lshlrev_b32 v58, 16, v19"); A("v_and_b32 v59, 0xffff0000, v19")
    for k in range(4): A(f"v_sub_f32 v{56+k}, v{56+k}, v60")
    A("v_cvt_pk_bf16_f32 v18, v56, v57"); A("v_cvt_pk_bf16_f32 v19, v58, v59")
    A("v_lshlrev_b32 v56, 16, v18"); A("v_and_b32 v57, 0xffff0000, v18")
    A("v_lshlrev_b32 v58, 16, v19"); A("v_and_b32 v59, 0xffff0000, v19")
    for k in range(4): A(f"v_mul_f32 v{56+k}, v{56+k}, v62")
    for k in range(4):
        A(f"v_cvt_pk_bf16_f32 v{56+k}, v{56+k}, v{56+k}")
        A(f"ds_write_b32 v21, v{56+k} offset:{L_XN + 64*k}")
    X = 24
    for q in range(4):
        for b in range(2):
            A(f"ds_read_b128 v[{X+16*b+4*q}:{X+16*b+4*q+3}], v22 offset:{L_XN + 512*b + 16*q}")
    A("v_and_b32 v18, 7, v0"); A("v_lshlrev_b32 v18, 6, v18")
    A("v_bfe_u32 v19, v0, 4, 1"); A("v_lshl_add_u32 v18, v19, 5, v18")
    A("v_lshrrev_b32 v19, 5, v0"); A("v_lshl_add_u32 v18, v19, 4, v18")
    A("v_bfe_u32 v20, v0, 3, 1")
    A("v_lshlrev_b32 v19, 4, v0")
    A("s_waitcnt lgkmcnt(0)")
    A(f"s_add_u32 s31, s31, 0x{TAGC:08x}")
    A("s_cmp_eq_u32 s3, 3")
    A("s_cbranch_scc1 L_H_B1")
    DP, DQ, AA = 64, 68, 72
    def abuild(t):
        for b in range(2):
            for r in range(4):
                A(f"v_and_b32 v{AA+4*b+r}, v{X+16*b+t}, v{88+r}")
    for t in range(10):
        abuild(t)
        A(f"s_waitcnt vmcnt({9-t})")
        mf(DP, AA, W + 4*t, t == 0)
        mf(DQ, AA + 4, W + 4*t, t == 0)
    stamp(6)
    if "noqx" in dbg: A("s_branch L_H_B1")
    A("s_mul_i32 s54, s62, 3"); A("s_add_u32 s54, s54, s3"); A("s_lshl_b32 s54, s54, 13")
    A("s_lshl_b32 s60, s63, 9"); A("s_add_u32 s54, s54, s60"); A(f"s_add_u32 s54, s54, {QS_OFF}")
    A("s_mul_i32 s53, s28, 3"); A("s_add_u32 s53, s53, s3"); A("s_lshl_b32 s53, s53, 13")
    A("s_lshl_b32 s60, s30, 12"); A("s_add_u32 s53, s53, s60"); A(f"s_add_u32 s53, s53, {QS_OFF}")
    A("v_lshl_add_u32 v21, v20, 12, v18")
    epilogue(DP, DQ, 80, "b")
    A("buffer_store_dwordx4 v[80:83], v21, s[32:35], s54 offen sc1")
    lds_ = [f"buffer_load_dwordx4 v[{24+4*k}:{27+4*k}], v19, s[32:35], s53 offen offset:{k*1024} sc1" for k in range(4)]
    poll("L_QPOLL", lds_, [25 + 2*k for k in range(8)], 8, sleep=12, pre=qsleep)
    for k in range(1, 4):
        A(f"v_add_f32 v24, v24, v{24+4*k}"); A(f"v_add_f32 v26, v26, v{26+4*k}")
    A("v_and_b32 v21, 31, v0"); A("v_lshlrev_b32 v21, 2, v21")
    A("v_lshrrev_b32 v22, 5, v0"); A("v_lshl_add_u32 v21, v22, 1, v21")
    A("v_permlane32_swap_b32 v24, v26")
    A("s_lshl_b32 s54, s3, 7")
    A("v_add_f32 v24, v24, v26")
    A("v_add_u32 v21, s54, v21")
    A("v_cvt_pk_bf16_f32 v24, v24, v24")
    A(f"ds_write_b16 v21, v24 offset:{L_Q}")
    A("s_waitcnt lgkmcnt(0)")
    LB("L_H_B1")
    stamp(1)
    A("s_barrier")
    wgmap(omap, 58, 59)
    A("s_cmp_eq_u32 s3, 0")
    A("s_cbranch_scc1 L_H0")
    A("s_cmp_eq_u32 s3, 2")
    A("s_cbranch_scc1 L_H2_PRE")
    A("s_cmp_eq_u32 s3, 1")
    A("s_cbranch_scc1 L_E1G")
    if "noglu" in dbg: A("s_branch L_E1G")
    A("s_cmp_ge_u32 s2, 240")
    A("s_cbranch_scc1 L_E1G")
    D4 = [64, 68, 224, 228]
    A("s_cmp_ge_u32 s2, 120")
    A("s_cbranch_scc1 L_G2")
    A(f"s_add_u32 s48, s2, {g1sh}"); A("s_and_b32 s48, s48, 7"); A("s_mul_i32 s51, s48, 3"); A("s_add_u32 s51, s51, s57")
    srd(36, 16, 640 * 1536 * 2); srd(40, 18, 640 * 1536 * 2)
    A("v_mul_u32_u24 v7, 3072, v5"); A("v_add_u32 v7, v7, v6")
    A(f"s_mul_i32 s53, s52, {128*3072}"); A("s_lshl_b32 s54, s51, 7"); A("s_add_u32 s53, s53, s54")
    LAG = HW // 2
    def g1c(t):
        abuild(t)
        A("s_nop 1")
        for mat in range(2):
            for b in range(2):
                mf(D4[2*mat+b], AA + 4*b, W + 8*t + 4*mat, t == 0)
    for t in range(16):
        if t >= LAG: A(f"s_waitcnt vmcnt({2*LAG-2})")
        A(f"buffer_load_dwordx4 v[{W+8*t}:{W+8*t+3}], v7, s[36:39], s53 offen {w_flags}")
        A(f"buffer_load_dwordx4 v[{W+8*t+4}:{W+8*t+7}], v7, s[40:43], s53 offen {w_flags}")
        if t < 15: A("s_add_u32 s53, s53, 24576")
        if t >= LAG: g1c(t - LAG)
    A("s_waitcnt vmcnt(0)")
    for t in range(16 - LAG, 16): g1c(t)
    A(f"s_mul_i32 s53, s51, {5*2048}"); A(f"s_add_u32 s53, s53, {G1_OFF}")
    A("s_lshl_b32 s54, s52, 11"); A("s_add_u32 s54, s54, s53")
    A("v_lshl_add_u32 v21, v20, 9, v18")
    A("s_nop 3")
    epilogue(D4[0], D4[1], 80, "b")
    epilogue(D4[2], D4[3], 84, "b")
    A("buffer_store_dwordx4 v[80:83], v21, s[32:35], s54 offen sc1")
    A("buffer_store_dwordx4 v[84:87], v21, s[32:35], s54 offen offset:1024 sc1")
    A("s_branch L_E1G")
    LB("L_G2")
    A(f"s_add_u32 s48, s2, {g2sh}"); A("s_and_b32 s48, s48, 7"); A("s_mul_i32 s56, s48, 3"); A("s_add_u32 s56, s56, s57")
    srd(44, 20, 1536 * 640 * 2)
    A("v_mul_u32_u24 v7, 1280, v5"); A("v_add_u32 v7, v7, v6")
    A(f"s_mul_i32 s53, s56, {64*1280}"); A("s_lshl_b32 s54, s52, 8"); A("s_add_u32 s53, s53, s54")
    for t in range(8):
        if t >= LAG: A(f"s_waitcnt vmcnt({2*LAG-2})")
        A(f"buffer_load_dwordx4 v[{W+8*t}:{W+8*t+3}], v7, s[44:47], s53 offen {w_flags}")
        A(f"buffer_load_dwordx4 v[{W+8*t+4}:{W+8*t+7}], v7, s[44:47], s53 offen offset:128 {w_flags}")
        if t < 7: A("s_add_u32 s53, s53, 10240")
    A(f"s_mul_i32 s53, s56, {5*2048}"); A(f"s_add_u32 s53, s53, {G1_OFF}")
    A("s_add_u32 s60, s53, 4096"); A("s_add_u32 s61, s53, 8192")
    quads = [W + 64 + 4*k for k in range(10)]
    sof = ["s53", "s60", "s61"]
    lds_ = [f"buffer_load_dwordx4 v[{quads[k]}:{quads[k]+3}], v19, s[32:35], {sof[k>>2]} offen offset:{(k&3)*1024} sc1" for k in range(10)]
    poll("L_G1POLL", lds_, [q + 1 for q in quads] + [q + 3 for q in quads], 8, sleep=100, pre=g1pre)
    for k in range(2, 10):
        base = quads[k & 1]
        A(f"v_add_f32 v{base}, v{base}, v{quads[k]}")
        A(f"v_add_f32 v{base+2}, v{base+2}, v{quads[k]+2}")
    g0, u0 = quads[0], quads[1]
    for e in range(2):
        rne(g0 + 2*e); rne(u0 + 2*e)
        A(f"v_mul_f32 v{g0+2*e}, v{g0+2*e}, v{u0+2*e}")
        A(f"v_cvt_pk_bf16_f32 v{8+e}, v{g0+2*e}, v{g0+2*e}")
    A("v_lshlrev_b32 v21, 3, v0")
    A(f"ds_write_b64 v21, v[8:9] offset:{L_HS}")
    A("v_lshlrev_b32 v21, 2, v5")
    for b in range(2):
        for t in range(8):
            A(f"ds_read_b32 v{X+16*b+t}, v21 offset:{L_HS + 256*b + 32*t}")
    A("s_waitcnt lgkmcnt(0)")
    for t in range(8):
        abuild(t)
        A("s_nop 1")
        for cg in range(2):
            for b in range(2):
                mf(D4[2*cg+b], AA + 4*b, W + 8*t + 4*cg, t == 0)
    A("v_bfe_u32 v21, v0, 1, 2"); A("v_mul_u32_u24 v21, 6144, v21")
    A("v_and_b32 v22, 0x7f, v18"); A("v_lshl_add_u32 v21, v22, 1, v21"); A("v_lshl_add_u32 v21, v20, 4, v21")
    A(f"s_mul_i32 s53, s52, {8*6144}"); A("s_lshl_b32 s54, s56, 8"); A("s_add_u32 s53, s53, s54")
    A(f"s_add_u32 s53, s53, {G2_OFF}"); A(f"s_add_u32 s54, s53, {4*6144}")
    epilogue(D4[0], D4[1], 80, "e")
    epilogue(D4[2], D4[3], 84, "e")
    A("buffer_store_dwordx4 v[80:83], v21, s[32:35], s53 offen sc1")
    A("buffer_store_dwordx4 v[84:87], v21, s[32:35], s54 offen sc1")
    LB("L_E1G")
    if ctl:
        assert not Z
        A("s_cmp_eq_u32 s3, 1")
        A("s_cbranch_scc0 L_CTLX")
        srd(40, 24, 256)
        A("v_mov_b32 v21, 0")
        A("s_mov_b32 s55, 0")
        A("s_mov_b32 s50, 0")
        LB("L_CTL")
        A("s_sleep 6")
        A(f"ds_read_b32 v22, v21 offset:{L_PRG}")
        A("s_add_u32 s50, s50, 1")
        A("s_waitcnt lgkmcnt(0)")
        A("v_readfirstlane_b32 s48, v22")
        A("s_cmp_gt_u32 s50, 0x40000")
        A("s_cbranch_scc1 L_CTLX")
        A("s_cmp_le_u32 s48, s55")
        A("s_cbranch_scc1 L_CTL")
        A("s_sub_u32 s55, s48, 1")
        A("s_and_b32 s49, s55, 3"); A("s_lshl_b32 s49, s49, 6"); A("s_lshr_b32 s54, s55, 2"); A("s_lshl2_add_u32 s49, s54, s49")
        A("s_mov_b64 exec, 1")
        A("v_mov_b32 v22, 1")
        A("buffer_atomic_add v22, v21, s[40:43], s49 offen sc0 sc1")
        A("s_waitcnt vmcnt(0)")
        A("v_readfirstlane_b32 s49, v22")
        A("s_mov_b32 s55, s48")
        A(f"s_cmp_ge_u32 s49, {tf}"); A("s_cselect_b32 s54, 1, 0")
        A(f"s_cmp_lt_u32 s49, {ts}"); A("s_cselect_b32 s54, 2, s54")
        A("v_mov_b32 v22, s54")
        A(f"ds_write_b32 v21, v22 offset:{L_MODE}")
        A("s_mov_b64 exec, -1")
        A(f"s_cmp_lt_u32 s55, {len(MS)}")
        A("s_cbranch_scc1 L_CTL")
        LB("L_CTLX")
    if woh:
        A("s_cmp_eq_u32 s3, 1")
        A("s_cbranch_scc0 L_E1G2")
        srd(44, 12, 6144 * 640 * 2)
        A("v_mul_u32_u24 v21, 6554, v0"); A("v_lshrrev_b32 v21, 16, v21")
        A("v_mul_u32_u24 v22, 10, v21"); A("v_sub_u32 v22, v0, v22")
        A("v_mul_u32_u24 v21, 1280, v21"); A("v_lshl_add_u32 v21, v22, 4, v21")
        A(f"s_mul_i32 s54, s58, {192*1280}"); A("s_mul_i32 s48, s59, 160"); A("s_add_u32 s54, s54, s48")
        A(f"s_mov_b32 s56, {L_WO}")
        A("s_mov_b32 s50, 32")
        pre = wopre
        while pre > 0:
            A(f"s_sleep {min(pre, 127)}"); pre -= 127
        A("s_mov_b32 exec_hi, 0x0fffffff")
        LB("L_WOL")
        A("s_mov_b32 m0, s56")
        A(f"s_waitcnt vmcnt({woh-1})")
        A(f"buffer_load_dwordx4 v21, s[44:47], s54 offen {wo_flags} lds")
        A("s_add_u32 s56, s56, 960"); A("s_add_u32 s54, s54, 7680")
        A("s_sub_u32 s50, s50, 1"); A("s_cmp_lg_u32 s50, 0"); A("s_cbranch_scc1 L_WOL")
        A("s_mov_b32 exec_hi, -1")
        A("s_waitcnt vmcnt(0)")
        LB("L_E1G2")
    A("s_lshr_b32 s55, s3, 1")
    A("s_lshl_b32 s53, s58, 13"); A(f"s_add_u32 s53, s53, {E1_OFF}"); A("s_lshl_b32 s54, s55, 12"); A("s_add_u32 s53, s53, s54")
    A("s_mul_i32 s54, s55, 384")
    A("v_bfe_u32 v21, v0, 2, 2"); A("v_bfe_u32 v22, v0, 4, 1"); A("v_lshl_add_u32 v21, v21, 1, v22")
    A("v_and_b32 v22, 0x23, v0"); A("v_lshl_add_u32 v21, v21, 2, v22")
    A("v_lshl_add_u32 v21, v21, 1, s54")
    stamp(2)
    A("s_barrier")
    stamp(3)
    lds_ = [f"buffer_load_dwordx4 v[{64+4*k}:{67+4*k}], v19, s[32:35], s53 offen offset:{k*1024} sc1" for k in range(4)]
    poll("L_E1POLL", lds_, [67 + 4*k for k in range(4)], 8)
    for i in range(3):
        A(f"v_add_f32 v{64+i}, v{64+i}, v{68+i}"); A(f"v_add_f32 v{72+i}, v{72+i}, v{76+i}")
    for i in range(3):
        A(f"v_add_f32 v{64+i}, v{64+i}, v{72+i}")
    for i in range(3):
        A(f"v_cvt_pk_bf16_f32 v{64+i}, v{64+i}, v{64+i}")
        A(f"ds_write_b16 v21, v{64+i} offset:{L_OBF + 128*i}")
    A("s_waitcnt lgkmcnt(0)")
    stamp(4)
    A("s_barrier")
    A("s_branch L_fin")
    LB("L_H2_PRE")
    A(f"s_cmp_lt_u32 s2, {red_base}")
    A("s_cbranch_scc1 L_H2_IDLE")
    A(f"s_cmp_ge_u32 s2, {red_base+40}")
    A("s_cbranch_scc1 L_H2_IDLE")
    A(f"s_sub_u32 s55, s2, {red_base}")
    A("v_bfe_u32 v21, v0, 4, 1"); A("v_mul_u32_u24 v21, 1280, v21")
    A("v_and_b32 v22, 15, v0"); A("v_lshl_add_u32 v21, v22, 1, v21")
    A("s_lshl_b32 s54, s55, 5"); A("v_add_u32 v92, s54, v21")
    A("global_load_ushort v93, v92, s[4:5]")
    A("s_mul_i32 s53, s55, 6144"); A(f"s_add_u32 s53, s53, {G2_OFF}"); A("s_add_u32 s60, s53, 4096")
    lds_ = [f"buffer_load_dwordx4 v[{W+4*k}:{W+4*k+3}], v19, s[32:35], {'s53' if k < 4 else 's60'} offen offset:{(k&3)*1024} sc1" for k in range(6)]
    poll("L_G2POLL", lds_, [W + 4*k + 1 for k in range(6)] + [W + 4*k + 3 for k in range(6)], 8, sleep=64, pre=g2pre)
    def sum_pairs(n):
        for k in range(1, n):
            A(f"v_add_f32 v{W}, v{W}, v{W+4*k}"); A(f"v_add_f32 v{W+2}, v{W+2}, v{W+4*k+2}")
        A("s_nop 1")
        A(f"v_permlane16_swap_b32 v{W}, v{W+2}")
        A(f"v_add_f32 v{W}, v{W}, v{W+2}")
        A(f"v_mov_b32 v{W+2}, v{W}"); A("s_nop 1")
        A(f"v_permlane32_swap_b32 v{W+2}, v{W}")
        A(f"v_add_f32 v{W}, v{W}, v{W+2}")
        rne(W)
    sum_pairs(6)
    A(f"v_mul_f32 v21, 0x{LOG2E ^ 0x80000000:08x}, v{W}")
    A("v_exp_f32 v21, v21"); A("s_nop 0")
    A("v_add_f32 v21, 1.0, v21")
    A("v_rcp_f32 v21, v21"); A("s_nop 0")
    A(f"v_mul_f32 v94, v{W}, v21")
    rne(94)
    A("v_lshlrev_b32 v93, 16, v93")
    A("s_lshl_b32 s53, s55, 13"); A(f"s_add_u32 s53, s53, {E2_OFF}"); A("s_add_u32 s60, s53, 4096")
    stamp(2)
    A("s_barrier")
    A("s_barrier")
    stamp(4)
    lds_ = [f"buffer_load_dwordx4 v[{W+4*k}:{W+4*k+3}], v19, s[32:35], {'s53' if k < 4 else 's60'} offen offset:{(k&3)*1024} sc1" for k in range(8)]
    poll("L_E2POLL", lds_, [W + 4*k + 1 for k in range(8)] + [W + 4*k + 3 for k in range(8)], 8)
    sum_pairs(8)
    A(f"v_mul_f32 v{W}, v{W}, v94")
    rne(W)
    A(f"v_add_f32 v{W}, v{W}, v93")
    A(f"v_cvt_pk_bf16_f32 v{W}, v{W}, v{W}")
    A("s_mov_b32 exec_hi, 0")
    A(f"global_store_short v92, v{W}, s[22:23]")
    A("s_cmp_eq_u32 s55, 0")
    A("s_cbranch_scc0 L_fin")
    A("s_mov_b32 exec_lo, 1")
    A("v_mov_b32 v21, s31"); A(f"v_mov_b32 v22, {GEN_OFF}")
    A("buffer_store_dword v21, v22, s[32:35], 0 offen")
    A("s_branch L_fin")
    LB("L_H2_IDLE")
    A("s_barrier"); A("s_barrier")
    A("s_branch L_fin")
    LB("L_H0")
    if Z:
        A("s_lshl_b32 s61, s30, 5"); A("s_add_u32 s61, s61, s28")
        A("s_and_b32 s48, s29, 3"); A("s_cmp_lg_u32 s48, 0"); A("s_cbranch_scc1 L_H0_NI")
        A("s_lshl_b32 s48, s61, 7"); A(f"s_add_u32 s48, s48, {CNT_OFF}")
        A("v_mov_b32 v21, 0")
        A("s_mov_b64 exec, 1")
        A("buffer_store_dword v21, v21, s[32:35], s48 offen sc1")
        A("s_mov_b64 exec, -1")
        LB("L_H0_NI")
    A("v_and_b32 v21, 3, v0"); A("v_lshlrev_b32 v21, 4, v21")
    A("s_mov_b32 s50, 0")
    LB("L_MLPOLL")
    A("s_sleep 8")
    A(f"ds_read_b128 v[24:27], v21 offset:{L_ML}")
    A("s_add_u32 s50, s50, 1")
    A("s_waitcnt lgkmcnt(0)")
    A("v_cmp_eq_u32 vcc, 0, v26")
    A("s_cmp_gt_u32 s50, 0x40000")
    A("s_cbranch_scc1 L_MLPOLL_x")
    A("s_cbranch_vccnz L_MLPOLL")
    LB("L_MLPOLL_x")
    def quad(op, d, s):
        A(f"{op}_dpp v{d}, v{s}, v{s} quad_perm:[1,0,3,2] {DPPF}"); A("s_nop 1")
        A(f"{op}_dpp v{d}, v{d}, v{d} quad_perm:[2,3,0,1] {DPPF}")
    quad("v_max_f32", 28, 24)
    A("v_sub_f32 v24, v24, v28"); A(f"v_mul_f32 v24, 0x{LOG2E:08x}, v24"); A("v_exp_f32 v24, v24"); A("s_nop 0")
    A("v_mul_f32 v25, v24, v25"); A("s_nop 1")
    quad("v_add_f32", 29, 25)
    A("s_getreg_b32 s57, hwreg(HW_REG_XCC_ID)"); A("s_and_b32 s57, s57, 15")
    A("v_mov_b32 v32, v28"); A("v_mov_b32 v33, v29"); A("v_mov_b32 v34, s57"); A("v_mov_b32 v35, s31")
    A("s_lshl_b32 s53, s28, 10"); A(f"s_add_u32 s53, s53, {LX_OFF}")
    A("s_lshl_b32 s54, s29, 7"); A("s_add_u32 s54, s54, s53")
    A("s_waitcnt vmcnt(0)")
    A("s_mov_b64 exec, 0xff")
    A("buffer_store_dwordx4 v[32:35], v19, s[32:35], s54 offen sc1")
    A("s_mov_b64 exec, -1")
    A("v_and_b32 v22, 7, v0"); A("v_lshlrev_b32 v22, 7, v22")
    poll("L_LXPOLL", ["buffer_load_dwordx4 v[36:39], v22, s[32:35], s53 offen sc1"], [39], 8, sleep=32, pre=lxpre)
    quad("v_max_f32", 28, 36)
    A("v_cmp_ne_u32 vcc, s57, v38")
    A("v_sub_f32 v36, v36, v28"); A(f"v_mul_f32 v36, 0x{LOG2E:08x}, v36")
    A("v_exp_f32 v36, v36"); A("s_lshl_b32 s60, s30, 2")
    A("v_mul_f32 v36, v36, v37"); A("s_nop 1")
    quad("v_add_f32", 29, 36)
    A("v_readlane_b32 s48, v28, s60"); A("v_readlane_b32 s49, v29, s60")
    A("s_cmp_eq_u64 vcc, 0"); A("s_cselect_b32 s57, 1, 0")
    A("v_subrev_f32 v32, s48, v32"); A("v_rcp_f32 v29, s49")
    A(f"v_mul_f32 v32, 0x{LOG2E:08x}, v32")
    A("v_exp_f32 v32, v32"); A("v_mul_f32 v24, v24, v29")
    A("v_mul_f32 v24, v24, v32"); A("s_nop 1")
    if fast: assert amap == omap and not Z
    if Z: A("v_lshlrev_b32 v21, 3, v21")
    if Z:
        A("v_mov_b32 v25, 1")
        A("v_lshrrev_b32 v21, 4, v21")
        A(f"ds_write_b64 v21, v[24:25] offset:{L_W}")
        A("v_lshrrev_b32 v21, 4, v0"); A("v_lshlrev_b32 v21, 3, v21")
        A(f"ds_read_b32 v26, v21 offset:{L_W}")
        A("v_lshlrev_b32 v21, 2, v0")
        for z in range(Z): A(f"ds_read_b32 v{40+2*z}, v21 offset:{L_PP + 256*z}")
        A(f"s_mul_i32 s53, s61, {96*128}"); A(f"s_add_u32 s53, s53, {PX_OFF}")
        A("s_and_b32 s48, s29, 3"); A("s_lshl_b32 s48, s48, 9"); A("s_add_u32 s53, s53, s48")
        A("v_lshlrev_b32 v21, 3, v0")
        A("s_waitcnt lgkmcnt(0)")
        for z in range(Z):
            A(f"v_mul_f32 v{40+2*z}, v{40+2*z}, v26")
            A(f"v_cvt_pk_bf16_f32 v{40+2*z}, v{40+2*z}, v{40+2*z}")
            A(f"v_mov_b32 v{41+2*z}, s31")
            A(f"buffer_store_dwordx2 v[{40+2*z}:{41+2*z}], v21, s[32:35], s53 offen sc1")
            if z < Z - 1: A("s_add_u32 s53, s53, 2048")
    else:
        for s in range(4):
            A(f"v_mov_b32_dpp v{28+s}, v24 quad_perm:[{s},{s},{s},{s}] {DPPF}")
    A("v_lshlrev_b32 v21, 2, v0")
    A("s_lshl_b32 s54, s28, 13"); A(f"s_add_u32 s54, s54, {E1_OFF}"); A("s_lshl_b32 s53, s29, 10"); A("s_add_u32 s54, s54, s53")
    A("v_mov_b32 v35, s31")
    A("s_mov_b32 s55, 4")
    stamp(2)
    A("s_barrier")
    stamp(3)
    if fast: A("s_cmp_eq_u32 s57, 1")
    po = L_PART // 256
    assert L_PART % 256 == 0
    for m in range(12):
        A(f"ds_read2st64_b32 v[{40+2*m}:{41+2*m}], v21 offset0:{po+2*m} offset1:{po+2*m+1}")
    for e in range(24):
        k, i = divmod(e, 3)
        if e % 6 == 0: A(f"s_waitcnt lgkmcnt({9 - 3*(e//6)})")
        if Z:
            if k == 1: A(f"v_add_f32 v{32+i}, v{40+i}, v{40+e}")
            elif k > 1: A(f"v_add_f32 v{32+i}, v{32+i}, v{40+e}")
        elif k == 0: A(f"v_mul_f32 v{32+i}, v28, v{40+e}")
        else: A(f"v_fmac_f32 v{32+i}, v{28 + k//2}, v{40+e}")
    if fast:
        A("s_cbranch_scc1 L_E1_FAST")
    A("buffer_store_dwordx4 v[32:35], v19, s[32:35], s54 offen sc1")
    A("s_branch L_WO_PRE")
    if fast:
        LB("L_E1_FAST")
        A("buffer_store_dwordx4 v[32:35], v19, s[32:35], s54 offen")
        A("s_branch L_WO_PRE")

    LB("L_STREAM")
    A(f"s_load_dword s31, s[26:27], {GEN_OFF}")
    for idx in range(WIN, 12): issue(idx)
    srd(40, 8, 100663296); srd(44, 12, 6144 * 640 * 2); srd(32, 26, WS_BYTES)
    wgmap(omap, 58, 59)
    A("v_bfe_u32 v4, v0, 3, 1"); A("v_lshrrev_b32 v5, 4, v0"); A("v_lshl_add_u32 v4, v4, 3, v5")
    A("v_mul_u32_u24 v2, 384, v4"); A("v_and_b32 v5, 7, v0"); A("v_lshl_add_u32 v2, v5, 4, v2")
    A("v_mul_u32_u24 v76, 6554, v0"); A("v_lshrrev_b32 v76, 16, v76")
    A("v_mul_u32_u24 v5, 10, v76"); A("v_sub_u32 v5, v0, v5")
    A("v_mul_u32_u24 v76, 1280, v76"); A("v_lshl_add_u32 v76, v5, 4, v76")
    A("s_mul_i32 s54, s58, 192"); A("s_mul_i32 s48, s55, 48"); A("s_add_u32 s54, s54, s48"); A("s_mul_i32 s54, s54, 1280")
    A("s_mul_i32 s48, s59, 160"); A("s_add_u32 s54, s54, s48")
    A(f"s_mul_i32 s56, s55, 7680"); A(f"s_add_u32 s56, s56, {L_WO}")
    A("v_lshrrev_b32 v5, 5, v0"); A("v_mul_u32_u24 v77, 768, v5"); A("v_and_b32 v5, 7, v0"); A("v_lshl_add_u32 v77, v5, 5, v77")
    A("v_bfe_u32 v5, v0, 4, 1"); A("v_lshl_add_u32 v77, v5, 4, v77")
    A("s_mul_i32 s48, s55, 1536"); A("v_add_u32 v77, s48, v77")
    amasks(4, 78)
    if Z:
        A("s_lshl_b32 s61, s30, 5"); A("s_add_u32 s61, s61, s28")
        A("s_lshl_b32 s60, s61, 7"); A(f"s_add_u32 s60, s60, {CNT_OFF}")
        A(f"s_mul_i32 s62, s61, {96*128}"); A(f"s_add_u32 s62, s62, {PX_OFF}")
        A(f"s_mul_i32 s61, s61, 1572864"); A(f"s_add_u32 s61, s61, {NS*6144}")
    BQ = 28
    for r in range(24): A(f"v_mov_b32 v{BQ+r}, 0")
    A("v_mov_b32 v79, 0xff800000")
    if ctl: A("v_mov_b32 v82, 0")
    for idx in range(12, R): issue(idx)
    stamp(1)
    A("s_barrier")
    A("s_mov_b32 exec_lo, 0x000f000f"); A("s_mov_b32 exec_hi, 0x00f000f0")
    for i in range(3): A(f"ds_read_b128 v[{BQ+4*i}:{BQ+4*i+3}], v3 offset:{L_Q + 128*i}")
    A("s_mov_b32 exec_lo, 0x0f000f00"); A("s_mov_b32 exec_hi, 0xf000f000")
    for i in range(3): A(f"ds_read_b128 v[{BQ+12+4*i}:{BQ+12+4*i+3}], v3 offset:{L_Q + 128*i}")
    A("s_mov_b64 exec, -1")
    A("s_waitcnt lgkmcnt(0)")
    A(f"s_add_u32 s31, s31, 0x{TAGC:08x}")
    stamp(2)
    S = 52
    def extract(t):
        a = 8 + 4 * (t & 1)
        v = S + t
        A(f"v_mov_b32_dpp v{v}, v{a} quad_perm:[0,0,0,0] {DPPF}")
        for k in (1, 2, 3):
            A(f"v_add_f32_dpp v{v}, v{a+k}, v{v} quad_perm:[{k},{k},{k},{k}] {DPPF}")
        rne(v)
        A(f"v_mul_f32 v{v}, 0x{SCALE:08x}, v{v}")
        rne(v)
        A(f"v_max_f32 v79, v79, v{v}")
    n = len(loads)
    def pexp(t):
        v = S + t
        A(f"v_sub_f32 v{v}, v{v}, v79")
        A(f"v_mul_f32 v{v}, 0x{LOG2E:08x}, v{v}")
        A(f"v_exp_f32 v{v}, v{v}")
        A("s_nop 0")
        if t == 0: A(f"v_mov_b32 v80, v{v}")
        else: A(f"v_add_f32 v80, v80, v{v}")
        if not Z or t < NS - 1: A(f"v_cvt_pk_bf16_f32 v{v}, v{v}, v{v}")
    def abuildv(p):
        A(f"v_and_b32 v68, v{p}, v4"); A(f"v_and_b32 v69, v{p}, v5")
        A(f"v_and_b32_dpp v70, v{p}, v6 row_half_mirror {DPPF}"); A(f"v_and_b32_dpp v71, v{p}, v7 row_half_mirror {DPPF}")
        A(f"v_and_b32_dpp v72, v{p}, v4 row_half_mirror {DPPF}"); A(f"v_and_b32_dpp v73, v{p}, v5 row_half_mirror {DPPF}")
        A(f"v_and_b32 v74, v{p}, v6"); A(f"v_and_b32 v75, v{p}, v7")
    def target(idx):
        fl = LK if idx < 96 else WIN
        if ctl: fl = max(fl, WH)
        if WK and WKa - WK <= idx < WKb - WK: fl = max(fl, WK)
        if SPN and idx >= len(loads) - SPN - SPW: fl = SPW
        return max(fl, R - max(0, idx - WIN + 1) // 2)
    ncons = n - 6 if Z else n
    for idx in range(ncons):
        ten, t, s, i = loads[idx]
        r = slot(idx)
        if ten == "V" and s == 0 and i == 0:
            if t == 0:
                A("s_nop 7")
                extract(15)
                A("s_nop 1")
                A(f"v_max_f32_dpp v79, v79, v79 row_half_mirror {DPPF}"); A("s_nop 1")
                A(f"v_max_f32_dpp v79, v79, v79 row_mirror {DPPF}")
                xrow_reduce("v_max_f32", 79, 80)
                pexp(0)
                stamp(3)
                A("s_nop 0")
            abuildv(S + t)
        after = issued[0] - pos[idx] - 1
        if after < max(WIN, WK, WH if ctl else 0, SPW if SPN else 0): A(f"s_waitcnt vmcnt({after})")
        elif ten == "V" and s == 0 and i == 0: A("s_nop 0")
        if ten == "K":
            mf(8 + 4 * (t & 1), r, BQ + 12 * s + 4 * i, s == 0 and i == 0)
        else:
            mf(16 + 4 * i, 68 + 4 * s, r, t == 0 and s == 0)
        tail_d = [p for p in range(NTOT) if ops[p][0] != "L" and p < len(ops) - (8 - nd if (not Z and not woh) else 0)]
        def ahead():
            return issued[0] - pos[idx] - sum(1 for p in tail_d if pos[idx] < p < issued[0] and ops[p][0] == "D")
        while issued[0] < NTOT and ahead() <= target(idx) and issued[0] - R <= idx:
            issue(issued[0])
        if ten == "K" and s == 1 and i == 2 and t > 0:
            A("s_nop 1")
            extract(t - 1)
        if ctl and s == 0 and i == 0:
            A(f"ds_read_b32 v83, v82 offset:{L_MODE}")
        if ctl and s == 1 and i == 1 and idx > MS[0]:
            A("s_waitcnt lgkmcnt(0)")
            A("v_readfirstlane_b32 s57, v83")
            A("s_nop 0")
            A("s_cmp_eq_u32 s57, 1"); A("s_cselect_b64 vcc, -1, 0")
            ctl_on[0] = True
            setflags()
        if ctl and idx in MS:
            A(f"v_mov_b32 v81, {MS.index(idx)+1}")
            A(f"ds_write_b32 v82, v81 offset:{L_PRG}")
        vi = idx - 96
        if not Z and vi == chk * 6 - 1: stamp(6)
        if 0 <= vi < 15:
            pexp(vi + 1)
        if vi == 15:
            A(f"v_add_f32_dpp v80, v80, v80 row_half_mirror {DPPF}"); A("s_nop 1")
            A(f"v_add_f32_dpp v80, v80, v80 row_mirror {DPPF}")
            xrow_reduce("v_add_f32", 80, 81)
            if Z:
                A("v_bfe_u32 v14, v0, 2, 2"); A("v_lshrrev_b32 v15, 4, v0"); A("v_lshl_add_u32 v14, v14, 2, v15")
                A("s_lshl_b32 s48, s55, 6"); A("v_lshl_add_u32 v15, v14, 2, s48")
                A("v_lshlrev_b32 v14, 3, v14")
                A("v_mov_b32 v13, 0")
                for z in range(Z): A(f"ds_write_b32 v15, v{S+NS+z} offset:{L_PP + 256*z}")
            A("v_mov_b32 v8, v79"); A("v_mov_b32 v9, v80"); A("v_mov_b32 v10, 1"); A("v_mov_b32 v11, 1")
            A("s_lshl_b32 s48, s55, 4"); A("v_mov_b32 v81, s48")
            A(f"ds_write_b128 v81, v[8:11] offset:{L_ML}")
            if Z: A("v_lshrrev_b32 v81, 1, v81")
            setflags()
    if Z:
        while issued[0] < NTOT: issue(issued[0])
        if stamps: A("s_mov_b64 s[68:69], s[64:65]")
        A(f"v_mul_f32 v{PB}, v{S+NS-1}, v82")
        A(f"v_mov_b32 v{PB+1}, s31")
        A(f"v_cvt_pk_bf16_f32 v{PB}, v{PB}, v{PB}")
        A("s_nop 3")
        for k in range(12): A(f"v_mul_f32 v{16+k}, v{16+k}, v82")
        def pcheck(lab, P, sreg):
            A(f"v_cmp_ne_u32 vcc, s31, v{P+1}")
            A(f"s_cbranch_vccz {lab}_ok")
            A("s_mov_b32 s50, 0")
            LB(lab + "_r")
            A("s_sleep 4")
            A(f"buffer_load_dwordx2 v[{P}:{P+1}], v14, s[32:35], {sreg} offen sc1")
            A("s_add_u32 s50, s50, 1")
            A("s_waitcnt vmcnt(0)")
            A(f"v_cmp_ne_u32 vcc, s31, v{P+1}")
            A("s_cmp_gt_u32 s50, 0x40000")
            A(f"s_cbranch_scc1 {lab}_ok")
            A(f"s_cbranch_vccnz {lab}_r")
            LB(lab + "_ok")
        def half(nm, X, PX_, sx, Y, PY, sy, flag):
            LB(nm)
            A("s_waitcnt vmcnt(7)")
            A(f"v_readfirstlane_b32 s48, v{TK}")
            A(f"s_mov_b32 s63, {flag}")
            A(f"s_cmp_ge_u32 s48, {NP}")
            A("s_cbranch_scc1 L_DEXIT")
            claim()
            if stamps: A("s_add_u32 s68, s68, 100"); A("s_addc_u32 s69, s69, 0")
            A(f"s_lshl_b32 {sx}, s48, 7"); A(f"s_add_u32 {sx}, {sx}, s62")
            A("s_and_b32 s49, s48, 15"); A("s_mul_i32 s49, s49, 98304"); A("s_lshr_b32 s48, s48, 4"); A("s_mul_i32 s48, s48, 6144")
            A("s_add_u32 s53, s49, s48"); A("s_add_u32 s53, s53, s61")
            A("s_waitcnt vmcnt(7)")
            pcheck(nm + "_p", PY, sy)
            A(f"buffer_load_dwordx2 v[{PX_}:{PX_+1}], v14, s[32:35], {sx} offen sc1")
            abuildv(PY)
            for k in range(6):
                sg, i = divmod(k, 3)
                A("s_waitcnt vmcnt(7)")
                mf(16 + 4 * i, 68 + 4 * sg, Y + 4 * k, False)
                A(f"buffer_load_dwordx4 v[{X+4*k}:{X+4*k+3}], v2, s[40:43], s53 offen offset:{sg*1536 + i*128} {vf}")
        half("L_DA", SETA, PA, "s51", SETB, PB, "s52", 0)
        half("L_DB", SETB, PB, "s52", SETA, PA, "s51", 1)
        A("s_branch L_DA")
        LB("L_DEXIT")
        if not woh:
            for k in range(8): dma(k)
        DX = 0 if woh else 8
        A("s_cmp_eq_u32 s63, 0")
        A("s_cbranch_scc1 L_DRB")
        def drain(nm, Y, PY, sy):
            LB(nm)
            A(f"s_waitcnt vmcnt({6+DX})")
            pcheck(nm + "_p", PY, sy)
            abuildv(PY)
            for k in range(6):
                sg, i = divmod(k, 3)
                A(f"s_waitcnt vmcnt({5+DX-k})")
                mf(16 + 4 * i, 68 + 4 * sg, Y + 4 * k, False)
        drain("L_DRA", SETA, PA, "s51")
        A("s_branch L_DEND")
        drain("L_DRB", SETB, PB, "s52")
        LB("L_DEND")
    A("s_mov_b32 exec_lo, 0x00ff00ff"); A("s_mov_b32 exec_hi, 0xff00ff00")
    A("s_nop 5")
    for i in range(3):
        A(f"ds_write_b128 v77, v[{16+4*i}:{19+4*i}] offset:{L_PART + 256*i}")
    A("s_mov_b64 exec, -1")
    while issued[0] < NTOT: issue(issued[0], nowait=True)
    A("s_waitcnt lgkmcnt(0)")
    stamp(4)
    A("s_barrier")
    LB("L_WO_PRE")
    A("v_bfe_u32 v1, v0, 1, 1"); A("v_mul_u32_u24 v1, 384, v1"); A("v_lshrrev_b32 v2, 4, v0"); A("v_lshl_add_u32 v1, v2, 4, v1")
    A("v_lshrrev_b32 v2, 2, v0"); A("v_mul_u32_u24 v2, 160, v2")
    A("v_and_b32 v3, 3, v0"); A("v_lshl_add_u32 v2, v3, 3, v2")
    A("s_lshl_b32 s48, s55, 5"); A("v_add_u32 v2, s48, v2")
    A("v_lshlrev_b32 v3, 4, v0")
    A("s_mul_i32 s48, s59, 5"); A("s_add_u32 s48, s48, s55"); A("s_lshl_b32 s48, s48, 5"); A("s_add_u32 s48, s48, s58")
    A("s_lshl_b32 s48, s48, 8"); A(f"s_add_u32 s48, s48, {E2_OFF}")
    A("s_cmp_eq_u32 s55, 4")
    A("s_cbranch_scc1 L_WO_B3")
    A("s_waitcnt vmcnt(0)")
    LB("L_WO_B3")
    stamp(5)
    A("s_barrier")
    for s in range(6):
        A(f"ds_read_b128 v[{96+8*s}:{99+8*s}], v1 offset:{L_OBF + 64*s}")
        A(f"ds_read_b64_tr_b16 v[{100+8*s}:{101+8*s}], v2 offset:{L_WO + 5120*s}")
        A(f"ds_read_b64_tr_b16 v[{102+8*s}:{103+8*s}], v2 offset:{L_WO + 5120*s + 2560}")
    for s in range(6):
        A(f"s_waitcnt lgkmcnt({min(15, 3*(5-s))})")
        mf(8, 96 + 8*s, 100 + 8*s, s == 0)
    A("s_mov_b32 exec_lo, 0xffff"); A("s_mov_b32 exec_hi, 0")
    A("s_nop 5")
    A("v_mov_b32 v9, s31"); A("v_mov_b32 v11, s31")
    A("buffer_store_dwordx4 v[8:11], v3, s[32:35], s48 offen sc1")
    LB("L_fin")
    if stamps:
        stamp(7)
        A("s_mov_b64 exec, 1")
        A("s_waitcnt lgkmcnt(0)")
        A("s_lshl_b32 s48, s2, 3"); A("s_add_u32 s48, s48, s3"); A("s_lshl_b32 s48, s48, 6"); A(f"s_add_u32 s48, s48, {STAMP_OFF}")
        A("v_mov_b32 v1, 0")
        for q in range(4):
            for k in range(4): A(f"v_mov_b32 v{4+k}, s{64+4*q+k}")
            A(f"buffer_store_dwordx4 v[4:7], v1, s[32:35], s48 offen offset:{16*q}")
            A("s_nop 1")
    LB("L_end")
    A("s_endpgm")
    L.append('.section .rodata,"a"'); L.append(".p2align 6"); L.append(f".amdhsa_kernel {KNAME}")
    for d in ["next_free_vgpr 256", "next_free_sgpr 96", "accum_offset 256", "group_segment_fixed_size 0", "kernarg_size 96",
              "user_sgpr_count 2", "user_sgpr_kernarg_segment_ptr 1", "system_sgpr_workgroup_id_x 1", "float_denorm_mode_32 3"]:
        L.append("  .amdhsa_" + d)
    L.append(".end_amdhsa_kernel")
    return "\n".join(L) + "\n"

if __name__ == "__main__":
    ap = argparse.ArgumentParser()
    ap.add_argument("-o", default="k.s")
    ap.add_argument("--R", type=int, default=42)
    ap.add_argument("--amap", default="mix")
    ap.add_argument("--Z", type=int, default=3)
    ap.add_argument("--ctl", type=int, default=0)
    ap.add_argument("--WH", type=int, default=7)
    ap.add_argument("--WL", type=int, default=4)
    ap.add_argument("--tf", type=int, default=160)
    ap.add_argument("--ts", type=int, default=96)
    ap.add_argument("--MS", default="48,78,108,132,156")
    ap.add_argument("--WK", type=int, default=0)
    ap.add_argument("--WKa", type=int, default=0)
    ap.add_argument("--WKb", type=int, default=0)
    ap.add_argument("--nd", type=int, default=0)
    ap.add_argument("--nv", type=int, default=0)
    ap.add_argument("--fast", type=int, default=0)
    ap.add_argument("--woh", type=int, default=0)
    ap.add_argument("--wopre", type=int, default=0)
    ap.add_argument("--SPN", type=int, default=0)
    ap.add_argument("--SPW", type=int, default=10)
    ap.add_argument("--chk", type=int, default=9)
    ap.add_argument("--lxpre", type=int, default=60)
    ap.add_argument("--qmap", default="xcd")
    ap.add_argument("--g1sh", type=int, default=1)
    ap.add_argument("--g1pre", type=int, default=300)
    ap.add_argument("--omap", default="xcd")
    ap.add_argument("--stamps", action="store_true")
    ap.add_argument("--wo", default="nt")
    ap.add_argument("--w", default="nt")
    ap.add_argument("--WIN", type=int, default=5)
    ap.add_argument("--LK", type=int, default=10)
    ap.add_argument("--qsleep", type=int, default=60)
    ap.add_argument("--dbg", default="")
    ap.add_argument("--HW", type=int, default=4)
    ap.add_argument("--g2pre", type=int, default=480)
    ap.add_argument("--kf", default="nt")
    ap.add_argument("--vf", default="nt")
    a = ap.parse_args()
    open(a.o, "w").write(gen(R=a.R, ctl=a.ctl, WH=a.WH, WL=a.WL, tf=a.tf, ts=a.ts, MS=tuple(int(x) for x in a.MS.split(',')), WK=a.WK, WKa=a.WKa, WKb=a.WKb, nd=a.nd, nv=a.nv, fast=a.fast, woh=a.woh, wopre=a.wopre, SPN=a.SPN, SPW=a.SPW, chk=a.chk, Z=a.Z, lxpre=a.lxpre, HW=a.HW, g2pre=a.g2pre, qmap=a.qmap, g1sh=a.g1sh, g1pre=a.g1pre, amap=a.amap, omap=a.omap, stamps=a.stamps, wo_flags=a.wo, w_flags=a.w, WIN=a.WIN, LK=a.LK,
                             qsleep=a.qsleep, dbg=tuple(a.dbg.split(',')), kf=a.kf.replace('+', ' '), vf=a.vf.replace('+', ' ')))
```

```python
import sys, argparse
KNAME = "recurrent_scan__gqa_block_cached__glu_gated_bilinear__decode_kernel"
HEADER = open("recurrent_scan__gqa_block_cached__glu_gated_bilinear__decode.s.ref").read().split("; Override launch")[0]

GEN_OFF = 0
LX_OFF = 4096
QS_OFF = LX_OFF + 256 * 128
E1_OFF = QS_OFF + 32 * 3 * 8192
E2_OFF = E1_OFF + 256 * 1024
G1_OFF = E2_OFF + 40 * 32 * 256
G2_OFF = G1_OFF + 24 * 10 * 2048
CNT_OFF = G2_OFF + 40 * 24 * 256
PX_OFF = CNT_OFF + 64 * 128
XT_OFF = PX_OFF + 64 * 96 * 128
WS_USED = XT_OFF + 24 * 128
STAMP_OFF = 4 << 20
WS_BYTES = 402653184
L_XN = 0
L_Q = 2048
L_ML = 2432
L_W = 2496
L_PRG = 2528
L_MODE = 2532
L_OBF = 2560
L_HS = 3328
L_PART = 3840
L_PP = 9984
L_WO = 11520
LDS_BYTES = L_WO + 30720
TAGC = 0x9E3779B1
LOG2E = 0x3FB8AA3B
SCALE = 0x3D93CD3A
DPPF = "row_mask:0xf bank_mask:0xf"

def gen(R=42, amap="xcd", omap="xcd1", qmap="xcd7", g1sh=1, g2sh=0, g1pre=120, lxpre=100, stamps=False, wo_flags="nt", w_flags="nt", red_base=216, WIN=5, HW=4, LK=10, g2pre=480,
        qsleep=40, dbg=(), kf='nt', vf='nt', Z=3, chk=9, woh=0, wopre=0, SPN=0, SPW=10, fast=0, nd=0, nv=0, WK=0, WKa=0, WKb=0, ctl=0, WH=7, WL=4, MS=(48, 78, 108, 132, 156), tf=160, ts=96, qfast=0, qto=8, gfast=0):
    L = []
    A = lambda s: L.append("  " + s)
    LB = lambda s: L.append(s + ":")
    C = lambda s: L.append("  ; " + s)
    def stamp(k):
        if stamps:
            A(f"s_memrealtime s[{64+2*k}:{65+2*k}]")
    def srd(d, plo, size):
        A(f"s_mov_b32 s{d}, s{plo}"); A(f"s_mov_b32 s{d+1}, s{plo+1}")
        A(f"s_mov_b32 s{d+2}, {size}"); A(f"s_mov_b32 s{d+3}, 0x20000")
    def amasks(base, tmp):
        A(f"v_and_b32 v{tmp}, 1, v0")
        A(f"v_lshlrev_b32 v{tmp}, 4, v{tmp}")
        A("s_mov_b32 s48, 0xffff")
        A(f"v_lshlrev_b32_e64 v{tmp}, v{tmp}, s48")
        for r in range(4):
            A(f"s_mov_b32 s48, 0x{0x03030303 << (2*r):08x}")
            A("s_mov_b32 s49, s48")
            A(f"v_cndmask_b32_e64 v{base+r}, 0, v{tmp}, s[48:49]")
    def xrow_reduce(op, v, t):
        A(f"v_mov_b32 v{t}, v{v}"); A("s_nop 1")
        A(f"v_permlane16_swap_b32 v{t}, v{v}")
        A(f"{op} v{v}, v{v}, v{t}")
        A(f"v_mov_b32 v{t}, v{v}"); A("s_nop 1")
        A(f"v_permlane32_swap_b32 v{t}, v{v}")
        A(f"{op} v{v}, v{v}, v{t}")
    def rne(v):
        A(f"v_cvt_pk_bf16_f32 v{v}, v{v}, v{v}")
        A(f"v_and_b32 v{v}, 0xffff0000, v{v}")
    def epilogue(P, Q, G, kind):
        for a in (P, Q, P + 1, Q + 1):
            A(f"v_permlane32_swap_b32 v{a}, v{a+2}")
        A(f"v_mov_b32 v{G+1}, s31"); A(f"v_mov_b32 v{G+3}, s31")
        lo = lambda d, x: A(f"v_add_f32_dpp v{d}, v{x+2}, v{x} row_shl:8 {DPPF}")
        hi = lambda d, x: A(f"v_add_f32_dpp v{d}, v{x}, v{x+2} row_shr:8 {DPPF}")
        if kind == "b":
            lo(G, P); lo(G + 2, P + 1); hi(G, Q); hi(G + 2, Q + 1)
        else:
            lo(G, P); lo(G + 2, Q); hi(G, P + 1); hi(G + 2, Q + 1)
    def poll(label, loads, tagregs, tmp, sleep=0, pre=0):
        while pre > 0:
            A(f"s_sleep {min(pre, 127)}"); pre -= 127
        if label in dbg:
            for ld in loads: A(ld)
            A("s_waitcnt vmcnt(0)")
            return
        A("s_mov_b32 s50, 0")
        LB(label)
        for ld in loads: A(ld)
        A("s_add_u32 s50, s50, 1")
        A("s_waitcnt vmcnt(0)")
        A(f"v_xor_b32 v{tmp}, s31, v{tagregs[0]}")
        rest = list(tagregs[1:])
        while rest:
            if len(rest) >= 2:
                A(f"v_xor_b32 v{tmp+1}, s31, v{rest[0]}"); A(f"v_xor_b32 v{tmp+2}, s31, v{rest[1]}")
                A(f"v_or3_b32 v{tmp}, v{tmp}, v{tmp+1}, v{tmp+2}"); rest = rest[2:]
            else:
                A(f"v_xor_b32 v{tmp+1}, s31, v{rest[0]}"); A(f"v_or_b32 v{tmp}, v{tmp}, v{tmp+1}"); rest = rest[1:]
        A(f"v_cmp_ne_u32 vcc, 0, v{tmp}")
        A("s_cmp_gt_u32 s50, 0x40000")
        A(f"s_cbranch_scc1 {label}_x")
        if sleep:
            A(f"s_cbranch_vccz {label}_x")
            A(f"s_sleep {sleep}")
            A(f"s_branch {label}")
        else:
            A(f"s_cbranch_vccnz {label}")
        LB(label + "_x")
    def wgmap(kind, sh, sj):
        if kind == "mix":
            A("s_bfe_u32 s48, s2, 0x20001")
            A("s_lshr_b32 s49, s2, 3"); A(f"s_lshl_b32 s{sh}, s48, 3"); A(f"s_sub_u32 s{sh}, s49, s{sh}"); A(f"s_and_b32 s{sh}, s{sh}, 31")
            A(f"s_and_b32 s{sj}, s2, 1"); A(f"s_lshl2_add_u32 s{sj}, s{sj}, s48")
        elif kind.startswith("xcd"):
            k = int(kind[3:] or 0)
            if k:
                A(f"s_add_u32 s48, s2, {k}"); A("s_and_b32 s48, s48, 7")
            else:
                A("s_and_b32 s48, s2, 7")
            A("s_lshr_b32 s49, s2, 3"); A(f"s_lshr_b32 s{sh}, s49, 3")
            A(f"s_lshl2_add_u32 s{sh}, s48, s{sh}"); A(f"s_and_b32 s{sj}, s49, 7")
        else:
            A(f"s_lshr_b32 s{sh}, s2, 3"); A(f"s_and_b32 s{sj}, s2, 7")
    mf = lambda d, a, b, first: A(f"v_mfma_f32_16x16x32_bf16 v[{d}:{d+3}], v[{a}:{a+3}], v[{b}:{b+3}], {'0' if first else f'v[{d}:{d+3}]'}")

    L.append(HEADER.rstrip("\n"))
    L.append(f"; @launch grid=(256,1,1) block=(512,1,1) lds={LDS_BYTES}")
    L.append('.amdgcn_target "amdgcn-amd-amdhsa--gfx950"')
    L.append(".text"); L.append(f".globl {KNAME}"); L.append(".p2align 8"); L.append(f".type {KNAME},@function")
    LB(KNAME)
    A("s_cmp_ge_u32 s2, 256")
    A("s_cbranch_scc1 L_end")
    stamp(0)
    A("s_load_dwordx16 s[4:19], s[0:1], 0")
    A("s_load_dwordx8 s[20:27], s[0:1], 64")
    A("v_lshrrev_b32 v1, 6, v0")
    A("v_and_b32 v0, 63, v0")
    A("v_readfirstlane_b32 s3, v1")
    wgmap(amap, 28, 29)
    A("s_lshr_b32 s30, s29, 2")
    A("s_cmp_lt_u32 s3, 4")
    A("s_cbranch_scc1 L_HELP")
    RB = 84
    NS = 16 - Z
    NP = 16 * Z
    SETA, SETB, PA, PB, TK = 84, 28, 8, 10, 12
    loads = []
    for ten in ("K", "V"):
        for t in range(16 if ten == "K" else NS):
            for s in range(2):
                for i in range(3):
                    loads.append((ten, t, s, i))
    ops = [("L", k) for k in range(len(loads))]
    if Z:
        ops.insert(len(ops) - 7, ("A", 0))
    elif not woh:
        ops += [("D", k) for k in range(nd, 8)]
        for k in range(nd):
            ops.insert(len(loads) - nv + k, ("D", k))
    pos = {k: p for p, (kind, k) in enumerate(ops) if kind == "L"}
    def slot(k):
        if Z and k >= len(loads) - 6: return SETB + 4 * (k - (len(loads) - 6))
        return RB + 4 * (k % R)
    issued = [0]
    ctl_on = [False]
    def setflags():
        if ctl and ctl_on[0]:
            A("s_cmp_eq_u32 s57, 2")
    NTOT = len(ops)
    def winf(p):
        if WK and WKa <= p < WKb: return WK
        return SPW if (SPN and p >= len(loads) - SPN) else WIN
    def dma(k):
        A("s_mov_b32 exec_hi, 0x0fffffff")
        A(f"s_add_u32 m0, s56, {960*k}")
        if k: A("s_add_u32 s54, s54, 7680")
        else: A("s_nop 0")
        if "nowo" not in dbg: A(f"buffer_load_dwordx4 v76, s[44:47], s54 offen {wo_flags} lds")
        else: A("buffer_load_dword v78, v76, s[44:47], 0 offen")
        A("s_mov_b32 exec_hi, -1")
    def claim():
        A("s_mov_b64 exec, 1")
        A(f"v_mov_b32 v{TK}, 1")
        A(f"buffer_atomic_add v{TK}, v13, s[32:35], s60 offen sc0" + ("" if "aloc" in dbg else " sc1"))
        A("s_mov_b64 exec, -1")
    def issue(p, nowait=False):
        if ctl and ctl_on[0] and p < len(loads) - SPN and not nowait:
            A(f"s_waitcnt vmcnt({WH-1})")
            A(f"s_cbranch_vccnz L_w{p}")
            A(f"s_waitcnt vmcnt({WIN-1})")
            if WL < WIN:
                A(f"s_cbranch_scc0 L_w{p}")
                A(f"s_waitcnt vmcnt({WL-1})")
            LB(f"L_w{p}")
        elif p >= WIN and not nowait: A(f"s_waitcnt vmcnt({winf(p)-1})")
        kind, idx = ops[p]
        issued[0] += 1
        if kind == "D":
            dma(idx); return
        if kind == "A":
            A("s_mov_b32 s50, 0")
            LB("L_GATE")
            A(f"ds_read_b64 v[82:83], v81 offset:{L_W}")
            A("s_add_u32 s50, s50, 1")
            A("s_waitcnt lgkmcnt(0)")
            A("v_cmp_eq_u32 vcc, 0, v83")
            A("s_cmp_gt_u32 s50, 0x40000")
            A("s_cbranch_scc1 L_GATE_x")
            A("s_cbranch_vccz L_GATE_x")
            A("s_sleep 4")
            A("s_branch L_GATE")
            LB("L_GATE_x")
            stamp(6)
            claim(); return
        ten, t, s, i = loads[idx]
        r = slot(idx)
        if ten == "K":
            A(f"buffer_load_dwordx4 v[{r}:{r+3}], v1, s[36:39], s52 offen offset:{s*3072 + i*128} {kf}")
            if s == 1 and i == 2 and t < 15:
                A("s_add_u32 s52, s52, 6144"); setflags()
        else:
            A(f"buffer_load_dwordx4 v[{r}:{r+3}], v2, s[40:43], s53 offen offset:{s*1536 + i*128} {vf}")
            if s == 1 and i == 2 and t < 15:
                A("s_add_u32 s53, s53, 6144"); setflags()
    A("s_sub_u32 s55, s3, 4")
    A("v_lshrrev_b32 v4, 5, v0"); A("v_bfe_u32 v5, v0, 2, 2"); A("v_lshl_add_u32 v4, v4, 2, v5")
    A("v_mul_u32_u24 v1, 384, v4")
    A("v_and_b32 v5, 3, v0"); A("v_bfe_u32 v6, v0, 4, 1"); A("v_lshl_add_u32 v5, v6, 2, v5")
    A("v_lshlrev_b32 v3, 4, v5")
    A("v_add_u32 v1, v1, v3")
    A("s_lshl_b32 s48, s30, 5"); A("s_add_u32 s48, s48, s28"); A("s_lshl_b32 s48, s48, 2")
    A("s_and_b32 s49, s29, 3"); A("s_add_u32 s48, s48, s49"); A("s_lshl_b32 s48, s48, 2"); A("s_add_u32 s48, s48, s55")
    A("s_mul_i32 s52, s48, 98304")
    A("s_mov_b32 s53, s52")
    A("s_mov_b32 s38, 100663296"); A("s_mov_b32 s39, 0x20000")
    A("s_waitcnt lgkmcnt(0)")
    A("s_mov_b32 s36, s6"); A("s_mov_b32 s37, s7")
    for idx in range(WIN): issue(idx)
    A("s_branch L_STREAM")

    LB("L_HELP")
    A("v_lshrrev_b32 v3, 5, v0")
    A("v_and_b32 v4, 31, v0")
    A("v_mul_u32_u24 v3, 1280, v3")
    A("v_lshl_add_u32 v1, v4, 4, v3")
    A("v_lshl_add_u32 v2, v4, 3, v3")
    A("v_lshrrev_b32 v5, 3, v0")
    A("v_and_b32 v6, 7, v0")
    A("v_lshlrev_b32 v6, 4, v6")
    wgmap(qmap, 62, 63)
    A("s_lshr_b32 s49, s2, 3")
    A("s_sub_u32 s51, s49, 15"); A("s_cmp_ge_u32 s49, 15"); A("s_cselect_b32 s49, s51, s49")
    A("s_mul_i32 s57, s49, 13108"); A("s_lshr_b32 s57, s57, 16")
    A("s_mul_i32 s52, s57, 5"); A("s_sub_u32 s52, s49, s52")
    A("s_mul_i32 s55, s63, 160"); A("s_lshl_b32 s54, s52, 8")
    A("s_cmp_eq_u32 s3, 3")
    A("s_cselect_b32 s55, s54, s55")
    A("v_mul_u32_u24 v7, 12288, v5"); A("v_add_u32 v7, v7, v6")
    A(f"s_mul_i32 s53, s63, {80*12288}"); A("s_mul_i32 s54, s62, 384"); A("s_add_u32 s53, s53, s54")
    A("s_lshl_b32 s54, s3, 7"); A("s_add_u32 s53, s53, s54")
    A("s_mov_b32 s46, 2560"); A("s_mov_b32 s47, 0x20000")
    A(f"s_mov_b32 s38, {640*6144*2}"); A("s_mov_b32 s39, 0x20000")
    A("s_waitcnt lgkmcnt(0)")
    A("s_mov_b32 s44, s4"); A("s_mov_b32 s45, s5")
    A("buffer_load_dwordx4 v[8:11], v1, s[44:47], 0 offen")
    A("buffer_load_dwordx4 v[12:15], v1, s[44:47], 0 offen offset:512")
    A("buffer_load_dwordx2 v[16:17], v2, s[44:47], 0 offen offset:1024")
    A("buffer_load_dwordx2 v[18:19], v2, s[44:47], s55 offen")
    W = 96
    A("s_mov_b32 s36, s10"); A("s_mov_b32 s37, s11")
    A("s_cmp_eq_u32 s3, 3")
    A("s_cbranch_scc1 L_LN")
    for t in range(10):
        if "nowq" in dbg: break
        A(f"buffer_load_dwordx4 v[{W+4*t}:{W+4*t+3}], v7, s[36:39], s53 offen {w_flags}")
        if t < 9: A("s_add_u32 s53, s53, 98304")
    LB("L_LN")
    A(f"s_load_dword s31, s[26:27], {GEN_OFF}")
    srd(32, 26, WS_BYTES)
    amasks(88, 20)
    A("s_cmp_eq_u32 s3, 3")
    A("s_cselect_b32 s54, 1024, 0")
    A("v_lshrrev_b32 v21, 5, v0"); A("v_lshlrev_b32 v21, 9, v21"); A("v_and_b32 v22, 1, v0"); A("v_lshl_add_u32 v21, v22, 8, v21")
    A("v_bfe_u32 v22, v0, 1, 4"); A("v_lshl_add_u32 v21, v22, 2, v21"); A("v_add_u32 v21, s54, v21")
    A("v_lshl_add_u32 v22, v5, 6, s54")
    A("v_mov_b32 v23, 0"); A("v_lshlrev_b32 v24, 2, v0"); A("v_and_b32 v24, 127, v24")
    A(f"ds_write_b32 v24, v23 offset:{L_ML}")
    A("s_cbranch_scc0 L_LN_GO")
    A("s_waitcnt vmcnt(0)")
    LB("L_LN_GO")
    A("s_waitcnt vmcnt(10)" if "nowq" not in dbg else "s_waitcnt vmcnt(0)")
    stamp(5)
    U = 24
    for k in range(10):
        A(f"v_lshlrev_b32 v{U+2*k}, 16, v{8+k}")
        A(f"v_and_b32 v{U+2*k+1}, 0xffff0000, v{8+k}")
    def half_reduce(v, t):
        for sh in (8, 4, 2, 1):
            A("s_nop 1")
            A(f"v_add_f32_dpp v{v}, v{v}, v{v} row_ror:{sh} {DPPF}")
        A(f"v_mov_b32 v{t}, v{v}"); A("s_nop 1")
        A(f"v_permlane16_swap_b32 v{t}, v{v}")
        A(f"v_add_f32 v{v}, v{v}, v{t}")
    pk = lambda r: f"v[{r}:{r+1}]"
    A(f"v_pk_add_f32 v[60:61], {pk(U)}, {pk(U+2)}")
    for k in range(2, 10): A(f"v_pk_add_f32 v[60:61], v[60:61], {pk(U+2*k)}")
    A("v_add_f32 v60, v60, v61")
    half_reduce(60, 61)
    A("v_mul_f32 v60, 0x3acccccd, v60")
    for k in range(10):
        A(f"v_pk_add_f32 {pk(U+2*k)}, {pk(U+2*k)}, v[60:61] op_sel_hi:[1,0] neg_lo:[0,1] neg_hi:[0,1]")
    A(f"v_pk_mul_f32 v[62:63], {pk(U)}, {pk(U)}")
    for k in range(1, 10): A(f"v_pk_fma_f32 v[62:63], {pk(U+2*k)}, {pk(U+2*k)}, v[62:63]")
    A("v_add_f32 v62, v62, v63")
    half_reduce(62, 63)
    A("v_mul_f32 v62, 0x3acccccd, v62")
    rne(60); rne(62)
    A("v_add_f32 v62, 0x3727c5ac, v62")
    rne(62)
    A("v_sqrt_f32 v62, v62")
    A("v_lshlrev_b32 v56, 16, v18"); A("v_and_b32 v57, 0xffff0000, v18")
    rne(62)
    A("v_rcp_f32 v62, v62")
    A("v_lshlrev_b32 v58, 16, v19"); A("v_and_b32 v59, 0xffff0000, v19")
    for k in range(4): A(f"v_sub_f32 v{56+k}, v{56+k}, v60")
    A("v_cvt_pk_bf16_f32 v18, v56, v57"); A("v_cvt_pk_bf16_f32 v19, v58, v59")
    A("v_lshlrev_b32 v56, 16, v18"); A("v_and_b32 v57, 0xffff0000, v18")
    A("v_lshlrev_b32 v58, 16, v19"); A("v_and_b32 v59, 0xffff0000, v19")
    for k in range(4): A(f"v_mul_f32 v{56+k}, v{56+k}, v62")
    for k in range(4):
        A(f"v_cvt_pk_bf16_f32 v{56+k}, v{56+k}, v{56+k}")
        A(f"ds_write_b32 v21, v{56+k} offset:{L_XN + 64*k}")
    X = 24
    for q in range(4):
        for b in range(2):
            A(f"ds_read_b128 v[{X+16*b+4*q}:{X+16*b+4*q+3}], v22 offset:{L_XN + 512*b + 16*q}")
    A("v_and_b32 v18, 7, v0"); A("v_lshlrev_b32 v18, 6, v18")
    A("v_bfe_u32 v19, v0, 4, 1"); A("v_lshl_add_u32 v18, v19, 5, v18")
    A("v_lshrrev_b32 v19, 5, v0"); A("v_lshl_add_u32 v18, v19, 4, v18")
    A("v_bfe_u32 v20, v0, 3, 1")
    A("v_lshlrev_b32 v19, 4, v0")
    A("s_waitcnt lgkmcnt(0)")
    A(f"s_add_u32 s31, s31, 0x{TAGC:08x}")
    A("s_cmp_eq_u32 s3, 3")
    A("s_cbranch_scc1 L_H_B1")
    DP, DQ, AA = 64, 68, 72
    def abuild(t):
        for b in range(2):
            for r in range(4):
                A(f"v_and_b32 v{AA+4*b+r}, v{X+16*b+t}, v{88+r}")
    for t in range(10):
        abuild(t)
        A(f"s_waitcnt vmcnt({9-t})")
        mf(DP, AA, W + 4*t, t == 0)
        mf(DQ, AA + 4, W + 4*t, t == 0)
    stamp(6)
    if "noqx" in dbg: A("s_branch L_H_B1")
    A("s_mul_i32 s54, s62, 3"); A("s_add_u32 s54, s54, s3"); A("s_lshl_b32 s54, s54, 13")
    A("s_lshl_b32 s60, s63, 9"); A("s_add_u32 s54, s54, s60"); A(f"s_add_u32 s54, s54, {QS_OFF}")
    A("s_mul_i32 s53, s28, 3"); A("s_add_u32 s53, s53, s3"); A("s_lshl_b32 s53, s53, 13")
    A("s_lshl_b32 s60, s30, 12"); A("s_add_u32 s53, s53, s60"); A(f"s_add_u32 s53, s53, {QS_OFF}")
    A("v_lshl_add_u32 v21, v20, 12, v18")
    epilogue(DP, DQ, 80, "b")
    lds_ = [f"buffer_load_dwordx4 v[{24+4*k}:{27+4*k}], v19, s[32:35], s53 offen offset:{k*1024} sc1" for k in range(4)]
    if qfast:
        assert qmap == amap
        A("s_getreg_b32 s61, hwreg(HW_REG_XCC_ID)"); A("s_and_b32 s61, s61, 15"); A("s_xor_b32 s61, s61, s31")
        A("v_mov_b32 v83, s61")
        A("buffer_store_dwordx4 v[80:83], v21, s[32:35], s54 offen")
        pre = qsleep
        while pre > 0:
            A(f"s_sleep {min(pre, 127)}"); pre -= 127
        A("s_mov_b32 s50, 0")
        A("s_mov_b32 s57, 0")
        LB("L_QPOLL")
        for ld in lds_: A(ld)
        A("s_add_u32 s50, s50, 1")
        A("s_waitcnt vmcnt(0)")
        for k in range(4):
            A(f"v_xor_b32 v{25+4*k}, s31, v{25+4*k}"); A(f"v_xor_b32 v{27+4*k}, s61, v{27+4*k}")
        A("v_or3_b32 v8, v25, v29, v33"); A("v_or3_b32 v9, v27, v31, v35")
        A("v_or_b32 v8, v8, v37"); A("v_or_b32 v9, v9, v39")
        A("v_lshrrev_b32 v10, 4, v9"); A("v_or_b32 v8, v8, v10")
        A("v_cmp_ne_u32 vcc, 0, v8")
        A("s_cbranch_vccz L_QPOLL_ok")
        A(f"s_cmp_lg_u32 s50, {qto}")
        A("s_cbranch_scc1 L_QPOLL_n")
        A("buffer_store_dwordx4 v[80:83], v21, s[32:35], s54 offen sc1")
        LB("L_QPOLL_n")
        A("s_cmp_gt_u32 s50, 0x40000")
        A("s_cbranch_scc1 L_QPOLL_x")
        A("s_sleep 12")
        A("s_branch L_QPOLL")
        LB("L_QPOLL_ok")
        A("v_cmp_ne_u32 vcc, 0, v9")
        A("s_mov_b32 s57, 1")
        A("s_cbranch_vccz L_QPOLL_x")
        A("s_mov_b32 s57, 0")
        A("buffer_store_dwordx4 v[80:83], v21, s[32:35], s54 offen sc1")
        LB("L_QPOLL_x")
    else:
        A("buffer_store_dwordx4 v[80:83], v21, s[32:35], s54 offen " + ("" if "qplain" in dbg else "sc1"))
        poll("L_QPOLL", lds_, [25 + 2*k for k in range(8)], 8, sleep=12, pre=qsleep)
    for k in range(1, 4):
        A(f"v_add_f32 v24, v24, v{24+4*k}"); A(f"v_add_f32 v26, v26, v{26+4*k}")
    A("v_and_b32 v21, 31, v0"); A("v_lshlrev_b32 v21, 2, v21")
    A("v_lshrrev_b32 v22, 5, v0"); A("v_lshl_add_u32 v21, v22, 1, v21")
    A("v_permlane32_swap_b32 v24, v26")
    A("s_lshl_b32 s54, s3, 7")
    A("v_add_f32 v24, v24, v26")
    A("v_add_u32 v21, s54, v21")
    A("v_cvt_pk_bf16_f32 v24, v24, v24")
    A(f"ds_write_b16 v21, v24 offset:{L_Q}")
    A("s_waitcnt lgkmcnt(0)")
    LB("L_H_B1")
    stamp(1)
    A("s_barrier")
    wgmap(omap, 58, 59)
    A("s_cmp_eq_u32 s3, 0")
    A("s_cbranch_scc1 L_H0")
    A("s_cmp_eq_u32 s3, 2")
    A("s_cbranch_scc1 L_H2_PRE")
    A("s_cmp_eq_u32 s3, 1")
    A("s_cbranch_scc1 L_E1G")
    if "noglu" in dbg: A("s_branch L_E1G")
    A("s_cmp_ge_u32 s2, 240")
    A("s_cbranch_scc1 L_E1G")
    D4 = [64, 68, 224, 228]
    A("s_cmp_ge_u32 s2, 120")
    A("s_cbranch_scc1 L_G2")
    A(f"s_add_u32 s48, s2, {g1sh}"); A("s_and_b32 s48, s48, 7"); A("s_mul_i32 s51, s48, 3"); A("s_add_u32 s51, s51, s57")
    srd(36, 16, 640 * 1536 * 2); srd(40, 18, 640 * 1536 * 2)
    A("v_mul_u32_u24 v7, 3072, v5"); A("v_add_u32 v7, v7, v6")
    A(f"s_mul_i32 s53, s52, {128*3072}"); A("s_lshl_b32 s54, s51, 7"); A("s_add_u32 s53, s53, s54")
    LAG = HW // 2
    def g1c(t):
        abuild(t)
        A("s_nop 1")
        for mat in range(2):
            for b in range(2):
                mf(D4[2*mat+b], AA + 4*b, W + 8*t + 4*mat, t == 0)
    for t in range(16):
        if t >= LAG: A(f"s_waitcnt vmcnt({2*LAG-2})")
        A(f"buffer_load_dwordx4 v[{W+8*t}:{W+8*t+3}], v7, s[36:39], s53 offen {w_flags}")
        A(f"buffer_load_dwordx4 v[{W+8*t+4}:{W+8*t+7}], v7, s[40:43], s53 offen {w_flags}")
        if t < 15: A("s_add_u32 s53, s53, 24576")
        if t >= LAG: g1c(t - LAG)
    if gfast:
        assert g1sh == g2sh
        A("s_lshl_b32 s54, s51, 7"); A(f"s_add_u32 s54, s54, {XT_OFF}")
        A("s_mov_b64 exec, 31")
        A("buffer_load_dwordx2 v[8:9], v19, s[32:35], s54 offen sc1")
        A("s_mov_b64 exec, -1")
        A("s_getreg_b32 s61, hwreg(HW_REG_XCC_ID)"); A("s_and_b32 s61, s61, 15")
    A("s_waitcnt vmcnt(0)")
    for t in range(16 - LAG, 16): g1c(t)
    A(f"s_mul_i32 s53, s51, {5*2048}"); A(f"s_add_u32 s53, s53, {G1_OFF}")
    A("s_lshl_b32 s54, s52, 11"); A("s_add_u32 s54, s54, s53")
    A("v_lshl_add_u32 v21, v20, 9, v18")
    A("s_nop 3")
    epilogue(D4[0], D4[1], 80, "b")
    epilogue(D4[2], D4[3], 84, "b")
    gf = "" if "gplain" in dbg else "sc1"
    if gfast:
        A("s_mov_b64 exec, 31")
        A("v_xor_b32 v8, s61, v8"); A("v_xor_b32 v9, s31, v9"); A("v_or_b32 v8, v8, v9")
        A("v_cmp_ne_u32 vcc, 0, v8")
        A("s_mov_b64 exec, -1")
        A("s_cbranch_vccnz L_G1_S")
        A(f"buffer_store_dwordx4 v[80:83], v21, s[32:35], s54 offen")
        A(f"buffer_store_dwordx4 v[84:87], v21, s[32:35], s54 offen offset:1024")
        A("s_branch L_E1G")
        LB("L_G1_S")
    A(f"buffer_store_dwordx4 v[80:83], v21, s[32:35], s54 offen {gf}")
    A(f"buffer_store_dwordx4 v[84:87], v21, s[32:35], s54 offen offset:1024 {gf}")
    A("s_branch L_E1G")
    LB("L_G2")
    A(f"s_add_u32 s48, s2, {g2sh}"); A("s_and_b32 s48, s48, 7"); A("s_mul_i32 s56, s48, 3"); A("s_add_u32 s56, s56, s57")
    if gfast:
        A("s_getreg_b32 s61, hwreg(HW_REG_XCC_ID)"); A("s_and_b32 s61, s61, 15")
        A("s_lshl_b32 s54, s56, 7"); A("s_lshl_b32 s53, s52, 4"); A("s_add_u32 s54, s54, s53"); A(f"s_add_u32 s54, s54, {XT_OFF}")
        A("v_mov_b32 v8, s61"); A("v_mov_b32 v9, s31")
        A("s_mov_b64 exec, 1")
        A("buffer_store_dwordx2 v[8:9], v19, s[32:35], s54 offen sc1")
        A("s_mov_b64 exec, -1")
    srd(44, 20, 1536 * 640 * 2)
    A("v_mul_u32_u24 v7, 1280, v5"); A("v_add_u32 v7, v7, v6")
    A(f"s_mul_i32 s53, s56, {64*1280}"); A("s_lshl_b32 s54, s52, 8"); A("s_add_u32 s53, s53, s54")
    for t in range(8):
        if t >= LAG: A(f"s_waitcnt vmcnt({2*LAG-2})")
        A(f"buffer_load_dwordx4 v[{W+8*t}:{W+8*t+3}], v7, s[44:47], s53 offen {w_flags}")
        A(f"buffer_load_dwordx4 v[{W+8*t+4}:{W+8*t+7}], v7, s[44:47], s53 offen offset:128 {w_flags}")
        if t < 7: A("s_add_u32 s53, s53, 10240")
    A(f"s_mul_i32 s53, s56, {5*2048}"); A(f"s_add_u32 s53, s53, {G1_OFF}")
    A("s_add_u32 s60, s53, 4096"); A("s_add_u32 s61, s53, 8192")
    quads = [W + 64 + 4*k for k in range(10)]
    sof = ["s53", "s60", "s61"]
    lds_ = [f"buffer_load_dwordx4 v[{quads[k]}:{quads[k]+3}], v19, s[32:35], {sof[k>>2]} offen offset:{(k&3)*1024} sc1" for k in range(10)]
    poll("L_G1POLL", lds_, [q + 1 for q in quads] + [q + 3 for q in quads], 8, sleep=100, pre=g1pre)
    for k in range(2, 10):
        base = quads[k & 1]
        A(f"v_add_f32 v{base}, v{base}, v{quads[k]}")
        A(f"v_add_f32 v{base+2}, v{base+2}, v{quads[k]+2}")
    g0, u0 = quads[0], quads[1]
    for e in range(2):
        rne(g0 + 2*e); rne(u0 + 2*e)
        A(f"v_mul_f32 v{g0+2*e}, v{g0+2*e}, v{u0+2*e}")
        A(f"v_cvt_pk_bf16_f32 v{8+e}, v{g0+2*e}, v{g0+2*e}")
    A("v_lshlrev_b32 v21, 3, v0")
    A(f"ds_write_b64 v21, v[8:9] offset:{L_HS}")
    A("v_lshlrev_b32 v21, 2, v5")
    for b in range(2):
        for t in range(8):
            A(f"ds_read_b32 v{X+16*b+t}, v21 offset:{L_HS + 256*b + 32*t}")
    A("s_waitcnt lgkmcnt(0)")
    for t in range(8):
        abuild(t)
        A("s_nop 1")
        for cg in range(2):
            for b in range(2):
                mf(D4[2*cg+b], AA + 4*b, W + 8*t + 4*cg, t == 0)
    A("v_bfe_u32 v21, v0, 1, 2"); A("v_mul_u32_u24 v21, 6144, v21")
    A("v_and_b32 v22, 0x7f, v18"); A("v_lshl_add_u32 v21, v22, 1, v21"); A("v_lshl_add_u32 v21, v20, 4, v21")
    A(f"s_mul_i32 s53, s52, {8*6144}"); A("s_lshl_b32 s54, s56, 8"); A("s_add_u32 s53, s53, s54")
    A(f"s_add_u32 s53, s53, {G2_OFF}"); A(f"s_add_u32 s54, s53, {4*6144}")
    epilogue(D4[0], D4[1], 80, "e")
    epilogue(D4[2], D4[3], 84, "e")
    A("buffer_store_dwordx4 v[80:83], v21, s[32:35], s53 offen sc1")
    A("buffer_store_dwordx4 v[84:87], v21, s[32:35], s54 offen sc1")
    LB("L_E1G")
    if ctl:
        assert not Z
        A("s_cmp_eq_u32 s3, 1")
        A("s_cbranch_scc0 L_CTLX")
        srd(40, 24, 256)
        A("v_mov_b32 v21, 0")
        A("s_mov_b32 s55, 0")
        A("s_mov_b32 s50, 0")
        LB("L_CTL")
        A("s_sleep 6")
        A(f"ds_read_b32 v22, v21 offset:{L_PRG}")
        A("s_add_u32 s50, s50, 1")
        A("s_waitcnt lgkmcnt(0)")
        A("v_readfirstlane_b32 s48, v22")
        A("s_cmp_gt_u32 s50, 0x40000")
        A("s_cbranch_scc1 L_CTLX")
        A("s_cmp_le_u32 s48, s55")
        A("s_cbranch_scc1 L_CTL")
        A("s_sub_u32 s55, s48, 1")
        A("s_and_b32 s49, s55, 3"); A("s_lshl_b32 s49, s49, 6"); A("s_lshr_b32 s54, s55, 2"); A("s_lshl2_add_u32 s49, s54, s49")
        A("s_mov_b64 exec, 1")
        A("v_mov_b32 v22, 1")
        A("buffer_atomic_add v22, v21, s[40:43], s49 offen sc0 sc1")
        A("s_waitcnt vmcnt(0)")
        A("v_readfirstlane_b32 s49, v22")
        A("s_mov_b32 s55, s48")
        A(f"s_cmp_ge_u32 s49, {tf}"); A("s_cselect_b32 s54, 1, 0")
        A(f"s_cmp_lt_u32 s49, {ts}"); A("s_cselect_b32 s54, 2, s54")
        A("v_mov_b32 v22, s54")
        A(f"ds_write_b32 v21, v22 offset:{L_MODE}")
        A("s_mov_b64 exec, -1")
        A(f"s_cmp_lt_u32 s55, {len(MS)}")
        A("s_cbranch_scc1 L_CTL")
        LB("L_CTLX")
    if woh:
        A("s_cmp_eq_u32 s3, 1")
        A("s_cbranch_scc0 L_E1G2")
        srd(44, 12, 6144 * 640 * 2)
        A("v_mul_u32_u24 v21, 6554, v0"); A("v_lshrrev_b32 v21, 16, v21")
        A("v_mul_u32_u24 v22, 10, v21"); A("v_sub_u32 v22, v0, v22")
        A("v_mul_u32_u24 v21, 1280, v21"); A("v_lshl_add_u32 v21, v22, 4, v21")
        A(f"s_mul_i32 s54, s58, {192*1280}"); A("s_mul_i32 s48, s59, 160"); A("s_add_u32 s54, s54, s48")
        A(f"s_mov_b32 s56, {L_WO}")
        A("s_mov_b32 s50, 32")
        pre = wopre
        while pre > 0:
            A(f"s_sleep {min(pre, 127)}"); pre -= 127
        A("s_mov_b32 exec_hi, 0x0fffffff")
        LB("L_WOL")
        A("s_mov_b32 m0, s56")
        A(f"s_waitcnt vmcnt({woh-1})")
        A(f"buffer_load_dwordx4 v21, s[44:47], s54 offen {wo_flags} lds")
        A("s_add_u32 s56, s56, 960"); A("s_add_u32 s54, s54, 7680")
        A("s_sub_u32 s50, s50, 1"); A("s_cmp_lg_u32 s50, 0"); A("s_cbranch_scc1 L_WOL")
        A("s_mov_b32 exec_hi, -1")
        A("s_waitcnt vmcnt(0)")
        LB("L_E1G2")
    A("s_lshr_b32 s55, s3, 1")
    A("s_lshl_b32 s53, s58, 13"); A(f"s_add_u32 s53, s53, {E1_OFF}"); A("s_lshl_b32 s54, s55, 12"); A("s_add_u32 s53, s53, s54")
    A("s_mul_i32 s54, s55, 384")
    A("v_bfe_u32 v21, v0, 2, 2"); A("v_bfe_u32 v22, v0, 4, 1"); A("v_lshl_add_u32 v21, v21, 1, v22")
    A("v_and_b32 v22, 0x23, v0"); A("v_lshl_add_u32 v21, v21, 2, v22")
    A("v_lshl_add_u32 v21, v21, 1, s54")
    stamp(2)
    A("s_barrier")
    stamp(3)
    lds_ = [f"buffer_load_dwordx4 v[{64+4*k}:{67+4*k}], v19, s[32:35], s53 offen offset:{k*1024} sc1" for k in range(4)]
    poll("L_E1POLL", lds_, [67 + 4*k for k in range(4)], 8)
    for i in range(3):
        A(f"v_add_f32 v{64+i}, v{64+i}, v{68+i}"); A(f"v_add_f32 v{72+i}, v{72+i}, v{76+i}")
    for i in range(3):
        A(f"v_add_f32 v{64+i}, v{64+i}, v{72+i}")
    for i in range(3):
        A(f"v_cvt_pk_bf16_f32 v{64+i}, v{64+i}, v{64+i}")
        A(f"ds_write_b16 v21, v{64+i} offset:{L_OBF + 128*i}")
    A("s_waitcnt lgkmcnt(0)")
    stamp(4)
    A("s_barrier")
    A("s_branch L_fin")
    LB("L_H2_PRE")
    A(f"s_cmp_lt_u32 s2, {red_base}")
    A("s_cbranch_scc1 L_H2_IDLE")
    A(f"s_cmp_ge_u32 s2, {red_base+40}")
    A("s_cbranch_scc1 L_H2_IDLE")
    A(f"s_sub_u32 s55, s2, {red_base}")
    A("v_bfe_u32 v21, v0, 4, 1"); A("v_mul_u32_u24 v21, 1280, v21")
    A("v_and_b32 v22, 15, v0"); A("v_lshl_add_u32 v21, v22, 1, v21")
    A("s_lshl_b32 s54, s55, 5"); A("v_add_u32 v92, s54, v21")
    A("global_load_ushort v93, v92, s[4:5]")
    A("s_mul_i32 s53, s55, 6144"); A(f"s_add_u32 s53, s53, {G2_OFF}"); A("s_add_u32 s60, s53, 4096")
    lds_ = [f"buffer_load_dwordx4 v[{W+4*k}:{W+4*k+3}], v19, s[32:35], {'s53' if k < 4 else 's60'} offen offset:{(k&3)*1024} sc1" for k in range(6)]
    poll("L_G2POLL", lds_, [W + 4*k + 1 for k in range(6)] + [W + 4*k + 3 for k in range(6)], 8, sleep=64, pre=g2pre)
    def sum_pairs(n):
        for k in range(1, n):
            A(f"v_add_f32 v{W}, v{W}, v{W+4*k}"); A(f"v_add_f32 v{W+2}, v{W+2}, v{W+4*k+2}")
        A("s_nop 1")
        A(f"v_permlane16_swap_b32 v{W}, v{W+2}")
        A(f"v_add_f32 v{W}, v{W}, v{W+2}")
        A(f"v_mov_b32 v{W+2}, v{W}"); A("s_nop 1")
        A(f"v_permlane32_swap_b32 v{W+2}, v{W}")
        A(f"v_add_f32 v{W}, v{W}, v{W+2}")
        rne(W)
    sum_pairs(6)
    A(f"v_mul_f32 v21, 0x{LOG2E ^ 0x80000000:08x}, v{W}")
    A("v_exp_f32 v21, v21"); A("s_nop 0")
    A("v_add_f32 v21, 1.0, v21")
    A("v_rcp_f32 v21, v21"); A("s_nop 0")
    A(f"v_mul_f32 v94, v{W}, v21")
    rne(94)
    A("v_lshlrev_b32 v93, 16, v93")
    A("s_lshl_b32 s53, s55, 13"); A(f"s_add_u32 s53, s53, {E2_OFF}"); A("s_add_u32 s60, s53, 4096")
    stamp(2)
    A("s_barrier")
    A("s_barrier")
    stamp(4)
    lds_ = [f"buffer_load_dwordx4 v[{W+4*k}:{W+4*k+3}], v19, s[32:35], {'s53' if k < 4 else 's60'} offen offset:{(k&3)*1024} sc1" for k in range(8)]
    poll("L_E2POLL", lds_, [W + 4*k + 1 for k in range(8)] + [W + 4*k + 3 for k in range(8)], 8)
    sum_pairs(8)
    A(f"v_mul_f32 v{W}, v{W}, v94")
    rne(W)
    A(f"v_add_f32 v{W}, v{W}, v93")
    A(f"v_cvt_pk_bf16_f32 v{W}, v{W}, v{W}")
    A("s_mov_b32 exec_hi, 0")
    A(f"global_store_short v92, v{W}, s[22:23]")
    A("s_cmp_eq_u32 s55, 0")
    A("s_cbranch_scc0 L_fin")
    A("s_mov_b32 exec_lo, 1")
    A("v_mov_b32 v21, s31"); A(f"v_mov_b32 v22, {GEN_OFF}")
    A("buffer_store_dword v21, v22, s[32:35], 0 offen")
    A("s_branch L_fin")
    LB("L_H2_IDLE")
    A("s_barrier"); A("s_barrier")
    A("s_branch L_fin")
    LB("L_H0")
    if Z:
        A("s_lshl_b32 s61, s30, 5"); A("s_add_u32 s61, s61, s28")
        A("s_and_b32 s48, s29, 3"); A("s_cmp_lg_u32 s48, 0"); A("s_cbranch_scc1 L_H0_NI")
        A("s_lshl_b32 s48, s61, 7"); A(f"s_add_u32 s48, s48, {CNT_OFF}")
        A("v_mov_b32 v21, 0")
        A("s_mov_b64 exec, 1")
        A("buffer_store_dword v21, v21, s[32:35], s48 offen" + ("" if "aloc" in dbg else " sc1"))
        A("s_mov_b64 exec, -1")
        LB("L_H0_NI")
    A("v_and_b32 v21, 3, v0"); A("v_lshlrev_b32 v21, 4, v21")
    A("s_mov_b32 s50, 0")
    LB("L_MLPOLL")
    A("s_sleep 8")
    A(f"ds_read_b128 v[24:27], v21 offset:{L_ML}")
    A("s_add_u32 s50, s50, 1")
    A("s_waitcnt lgkmcnt(0)")
    A("v_cmp_eq_u32 vcc, 0, v26")
    A("s_cmp_gt_u32 s50, 0x40000")
    A("s_cbranch_scc1 L_MLPOLL_x")
    A("s_cbranch_vccnz L_MLPOLL")
    LB("L_MLPOLL_x")
    def quad(op, d, s):
        A(f"{op}_dpp v{d}, v{s}, v{s} quad_perm:[1,0,3,2] {DPPF}"); A("s_nop 1")
        A(f"{op}_dpp v{d}, v{d}, v{d} quad_perm:[2,3,0,1] {DPPF}")
    quad("v_max_f32", 28, 24)
    A("v_sub_f32 v24, v24, v28"); A(f"v_mul_f32 v24, 0x{LOG2E:08x}, v24"); A("v_exp_f32 v24, v24"); A("s_nop 0")
    A("v_mul_f32 v25, v24, v25"); A("s_nop 1")
    quad("v_add_f32", 29, 25)
    if not qfast:
        A("s_getreg_b32 s57, hwreg(HW_REG_XCC_ID)"); A("s_and_b32 s57, s57, 15")
    A("v_mov_b32 v32, v28"); A("v_mov_b32 v33, v29"); A("v_mov_b32 v34, s57"); A("v_mov_b32 v35, s31")
    A("s_lshl_b32 s53, s28, 10"); A(f"s_add_u32 s53, s53, {LX_OFF}")
    A("s_lshl_b32 s54, s29, 7"); A("s_add_u32 s54, s54, s53")
    A("s_waitcnt vmcnt(0)")
    A("s_mov_b64 exec, 0xff")
    if qfast:
        A("s_cmp_eq_u32 s57, 1")
        A("s_cbranch_scc1 L_LX_F")
        A("buffer_store_dwordx4 v[32:35], v19, s[32:35], s54 offen sc1")
        A("s_branch L_LX_G")
        LB("L_LX_F")
        A("buffer_store_dwordx4 v[32:35], v19, s[32:35], s54 offen")
        LB("L_LX_G")
    else:
        A("buffer_store_dwordx4 v[32:35], v19, s[32:35], s54 offen sc1")
    A("s_mov_b64 exec, -1")
    if qfast:
        A("s_lshl_b32 s60, s30, 9"); A("s_add_u32 s53, s53, s60")
        A("v_and_b32 v22, 3, v0"); A("v_lshlrev_b32 v22, 7, v22")
    else:
        A("v_and_b32 v22, 7, v0"); A("v_lshlrev_b32 v22, 7, v22")
    poll("L_LXPOLL", ["buffer_load_dwordx4 v[36:39], v22, s[32:35], s53 offen sc1"], [39], 8, sleep=32, pre=lxpre)
    quad("v_max_f32", 28, 36)
    if not qfast: A("v_cmp_ne_u32 vcc, s57, v38")
    A("v_sub_f32 v36, v36, v28"); A(f"v_mul_f32 v36, 0x{LOG2E:08x}, v36")
    A("v_exp_f32 v36, v36"); A("s_lshl_b32 s60, s30, 2")
    A("v_mul_f32 v36, v36, v37"); A("s_nop 1")
    quad("v_add_f32", 29, 36)
    if qfast:
        A("v_sub_f32 v32, v32, v28"); A("v_rcp_f32 v29, v29")
    else:
        A("v_readlane_b32 s48, v28, s60"); A("v_readlane_b32 s49, v29, s60")
        A("s_cmp_eq_u64 vcc, 0"); A("s_cselect_b32 s57, 1, 0")
        A("v_subrev_f32 v32, s48, v32"); A("v_rcp_f32 v29, s49")
    A(f"v_mul_f32 v32, 0x{LOG2E:08x}, v32")
    A("v_exp_f32 v32, v32"); A("v_mul_f32 v24, v24, v29")
    A("v_mul_f32 v24, v24, v32"); A("s_nop 1")
    if fast: assert amap == omap
    if Z: A("v_lshlrev_b32 v21, 3, v21")
    if Z:
        A("v_mov_b32 v25, 1")
        A("v_lshrrev_b32 v21, 4, v21")
        A(f"ds_write_b64 v21, v[24:25] offset:{L_W}")
        A("v_lshrrev_b32 v21, 4, v0"); A("v_lshlrev_b32 v21, 3, v21")
        A(f"ds_read_b32 v26, v21 offset:{L_W}")
        A("v_lshlrev_b32 v21, 2, v0")
        for z in range(Z): A(f"ds_read_b32 v{40+2*z}, v21 offset:{L_PP + 256*z}")
        A(f"s_mul_i32 s53, s61, {96*128}"); A(f"s_add_u32 s53, s53, {PX_OFF}")
        A("s_and_b32 s48, s29, 3"); A("s_lshl_b32 s48, s48, 9"); A("s_add_u32 s53, s53, s48")
        A("v_lshlrev_b32 v21, 3, v0")
        A("s_waitcnt lgkmcnt(0)")
        for z in range(Z):
            A(f"v_mul_f32 v{40+2*z}, v{40+2*z}, v26")
            A(f"v_cvt_pk_bf16_f32 v{40+2*z}, v{40+2*z}, v{40+2*z}")
            A(f"v_mov_b32 v{41+2*z}, s31")
            A(f"buffer_store_dwordx2 v[{40+2*z}:{41+2*z}], v21, s[32:35], s53 offen" + ("" if "aloc" in dbg else " sc1"))
            if z < Z - 1: A("s_add_u32 s53, s53, 2048")
    else:
        for s in range(4):
            A(f"v_mov_b32_dpp v{28+s}, v24 quad_perm:[{s},{s},{s},{s}] {DPPF}")
    A("v_lshlrev_b32 v21, 2, v0")
    A("s_lshl_b32 s54, s28, 13"); A(f"s_add_u32 s54, s54, {E1_OFF}"); A("s_lshl_b32 s53, s29, 10"); A("s_add_u32 s54, s54, s53")
    A("v_mov_b32 v35, s31")
    A("s_mov_b32 s55, 4")
    stamp(2)
    A("s_barrier")
    stamp(3)
    if fast: A("s_cmp_eq_u32 s57, 1")
    po = L_PART // 256
    assert L_PART % 256 == 0
    for m in range(12):
        A(f"ds_read2st64_b32 v[{40+2*m}:{41+2*m}], v21 offset0:{po+2*m} offset1:{po+2*m+1}")
    for e in range(24):
        k, i = divmod(e, 3)
        if e % 6 == 0: A(f"s_waitcnt lgkmcnt({9 - 3*(e//6)})")
        if Z:
            if k == 1: A(f"v_add_f32 v{32+i}, v{40+i}, v{40+e}")
            elif k > 1: A(f"v_add_f32 v{32+i}, v{32+i}, v{40+e}")
        elif k == 0: A(f"v_mul_f32 v{32+i}, v28, v{40+e}")
        else: A(f"v_fmac_f32 v{32+i}, v{28 + k//2}, v{40+e}")
    if fast:
        A("s_cbranch_scc1 L_E1_FAST")
    A("buffer_store_dwordx4 v[32:35], v19, s[32:35], s54 offen sc1")
    A("s_branch L_WO_PRE")
    if fast:
        LB("L_E1_FAST")
        A("buffer_store_dwordx4 v[32:35], v19, s[32:35], s54 offen")
        A("s_branch L_WO_PRE")

    LB("L_STREAM")
    A(f"s_load_dword s31, s[26:27], {GEN_OFF}")
    for idx in range(WIN, 12): issue(idx)
    srd(40, 8, 100663296); srd(44, 12, 6144 * 640 * 2); srd(32, 26, WS_BYTES)
    wgmap(omap, 58, 59)
    A("v_bfe_u32 v4, v0, 3, 1"); A("v_lshrrev_b32 v5, 4, v0"); A("v_lshl_add_u32 v4, v4, 3, v5")
    A("v_mul_u32_u24 v2, 384, v4"); A("v_and_b32 v5, 7, v0"); A("v_lshl_add_u32 v2, v5, 4, v2")
    A("v_mul_u32_u24 v76, 6554, v0"); A("v_lshrrev_b32 v76, 16, v76")
    A("v_mul_u32_u24 v5, 10, v76"); A("v_sub_u32 v5, v0, v5")
    A("v_mul_u32_u24 v76, 1280, v76"); A("v_lshl_add_u32 v76, v5, 4, v76")
    A("s_mul_i32 s54, s58, 192"); A("s_mul_i32 s48, s55, 48"); A("s_add_u32 s54, s54, s48"); A("s_mul_i32 s54, s54, 1280")
    A("s_mul_i32 s48, s59, 160"); A("s_add_u32 s54, s54, s48")
    A(f"s_mul_i32 s56, s55, 7680"); A(f"s_add_u32 s56, s56, {L_WO}")
    A("v_lshrrev_b32 v5, 5, v0"); A("v_mul_u32_u24 v77, 768, v5"); A("v_and_b32 v5, 7, v0"); A("v_lshl_add_u32 v77, v5, 5, v77")
    A("v_bfe_u32 v5, v0, 4, 1"); A("v_lshl_add_u32 v77, v5, 4, v77")
    A("s_mul_i32 s48, s55, 1536"); A("v_add_u32 v77, s48, v77")
    amasks(4, 78)
    if Z:
        A("s_lshl_b32 s61, s30, 5"); A("s_add_u32 s61, s61, s28")
        A("s_lshl_b32 s60, s61, 7"); A(f"s_add_u32 s60, s60, {CNT_OFF}")
        A(f"s_mul_i32 s62, s61, {96*128}"); A(f"s_add_u32 s62, s62, {PX_OFF}")
        A(f"s_mul_i32 s61, s61, 1572864"); A(f"s_add_u32 s61, s61, {NS*6144}")
    BQ = 28
    for r in range(24): A(f"v_mov_b32 v{BQ+r}, 0")
    A("v_mov_b32 v79, 0xff800000")
    if ctl: A("v_mov_b32 v82, 0")
    for idx in range(12, R): issue(idx)
    stamp(1)
    A("s_barrier")
    A("s_mov_b32 exec_lo, 0x000f000f"); A("s_mov_b32 exec_hi, 0x00f000f0")
    for i in range(3): A(f"ds_read_b128 v[{BQ+4*i}:{BQ+4*i+3}], v3 offset:{L_Q + 128*i}")
    A("s_mov_b32 exec_lo, 0x0f000f00"); A("s_mov_b32 exec_hi, 0xf000f000")
    for i in range(3): A(f"ds_read_b128 v[{BQ+12+4*i}:{BQ+12+4*i+3}], v3 offset:{L_Q + 128*i}")
    A("s_mov_b64 exec, -1")
    A("s_waitcnt lgkmcnt(0)")
    A(f"s_add_u32 s31, s31, 0x{TAGC:08x}")
    stamp(2)
    S = 52
    def extract(t):
        a = 8 + 4 * (t & 1)
        v = S + t
        A(f"v_mov_b32_dpp v{v}, v{a} quad_perm:[0,0,0,0] {DPPF}")
        for k in (1, 2, 3):
            A(f"v_add_f32_dpp v{v}, v{a+k}, v{v} quad_perm:[{k},{k},{k},{k}] {DPPF}")
        rne(v)
        A(f"v_mul_f32 v{v}, 0x{SCALE:08x}, v{v}")
        rne(v)
        A(f"v_max_f32 v79, v79, v{v}")
    n = len(loads)
    def pexp(t):
        v = S + t
        A(f"v_sub_f32 v{v}, v{v}, v79")
        A(f"v_mul_f32 v{v}, 0x{LOG2E:08x}, v{v}")
        A(f"v_exp_f32 v{v}, v{v}")
        A("s_nop 0")
        if t == 0: A(f"v_mov_b32 v80, v{v}")
        else: A(f"v_add_f32 v80, v80, v{v}")
        if not Z or t < NS - 1: A(f"v_cvt_pk_bf16_f32 v{v}, v{v}, v{v}")
    def abuildv(p):
        A(f"v_and_b32 v68, v{p}, v4"); A(f"v_and_b32 v69, v{p}, v5")
        A(f"v_and_b32_dpp v70, v{p}, v6 row_half_mirror {DPPF}"); A(f"v_and_b32_dpp v71, v{p}, v7 row_half_mirror {DPPF}")
        A(f"v_and_b32_dpp v72, v{p}, v4 row_half_mirror {DPPF}"); A(f"v_and_b32_dpp v73, v{p}, v5 row_half_mirror {DPPF}")
        A(f"v_and_b32 v74, v{p}, v6"); A(f"v_and_b32 v75, v{p}, v7")
    def target(idx):
        fl = LK if idx < 96 else WIN
        if ctl: fl = max(fl, WH)
        if WK and WKa - WK <= idx < WKb - WK: fl = max(fl, WK)
        if SPN and idx >= len(loads) - SPN - SPW: fl = SPW
        return max(fl, R - max(0, idx - WIN + 1) // 2)
    ncons = n - 6 if Z else n
    for idx in range(ncons):
        ten, t, s, i = loads[idx]
        r = slot(idx)
        if ten == "V" and s == 0 and i == 0:
            if t == 0:
                A("s_nop 7")
                extract(15)
                A("s_nop 1")
                A(f"v_max_f32_dpp v79, v79, v79 row_half_mirror {DPPF}"); A("s_nop 1")
                A(f"v_max_f32_dpp v79, v79, v79 row_mirror {DPPF}")
                xrow_reduce("v_max_f32", 79, 80)
                pexp(0)
                stamp(3)
                A("s_nop 0")
            abuildv(S + t)
        after = issued[0] - pos[idx] - 1
        if after < max(WIN, WK, WH if ctl else 0, SPW if SPN else 0): A(f"s_waitcnt vmcnt({after})")
        elif ten == "V" and s == 0 and i == 0: A("s_nop 0")
        if ten == "K":
            mf(8 + 4 * (t & 1), r, BQ + 12 * s + 4 * i, s == 0 and i == 0)
        else:
            mf(16 + 4 * i, 68 + 4 * s, r, t == 0 and s == 0)
        tail_d = [p for p in range(NTOT) if ops[p][0] != "L" and p < len(ops) - (8 - nd if (not Z and not woh) else 0)]
        def ahead():
            return issued[0] - pos[idx] - sum(1 for p in tail_d if pos[idx] < p < issued[0] and ops[p][0] == "D")
        while issued[0] < NTOT and ahead() <= target(idx) and issued[0] - R <= idx:
            issue(issued[0])
        if ten == "K" and s == 1 and i == 2 and t > 0:
            A("s_nop 1")
            extract(t - 1)
        if ctl and s == 0 and i == 0:
            A(f"ds_read_b32 v83, v82 offset:{L_MODE}")
        if ctl and s == 1 and i == 1 and idx > MS[0]:
            A("s_waitcnt lgkmcnt(0)")
            A("v_readfirstlane_b32 s57, v83")
            A("s_nop 0")
            A("s_cmp_eq_u32 s57, 1"); A("s_cselect_b64 vcc, -1, 0")
            ctl_on[0] = True
            setflags()
        if ctl and idx in MS:
            A(f"v_mov_b32 v81, {MS.index(idx)+1}")
            A(f"ds_write_b32 v82, v81 offset:{L_PRG}")
        vi = idx - 96
        if not Z and vi == chk * 6 - 1: stamp(6)
        if 0 <= vi < 15:
            pexp(vi + 1)
        if vi == 15:
            A(f"v_add_f32_dpp v80, v80, v80 row_half_mirror {DPPF}"); A("s_nop 1")
            A(f"v_add_f32_dpp v80, v80, v80 row_mirror {DPPF}")
            xrow_reduce("v_add_f32", 80, 81)
            if Z:
                A("v_bfe_u32 v14, v0, 2, 2"); A("v_lshrrev_b32 v15, 4, v0"); A("v_lshl_add_u32 v14, v14, 2, v15")
                A("s_lshl_b32 s48, s55, 6"); A("v_lshl_add_u32 v15, v14, 2, s48")
                A("v_lshlrev_b32 v14, 3, v14")
                A("v_mov_b32 v13, 0")
                for z in range(Z): A(f"ds_write_b32 v15, v{S+NS+z} offset:{L_PP + 256*z}")
            A("v_mov_b32 v8, v79"); A("v_mov_b32 v9, v80"); A("v_mov_b32 v10, 1"); A("v_mov_b32 v11, 1")
            A("s_lshl_b32 s48, s55, 4"); A("v_mov_b32 v81, s48")
            A(f"ds_write_b128 v81, v[8:11] offset:{L_ML}")
            if Z: A("v_lshrrev_b32 v81, 1, v81")
            setflags()
    if Z:
        while issued[0] < NTOT: issue(issued[0])
        if stamps: A("s_mov_b64 s[68:69], s[64:65]")
        A(f"v_mul_f32 v{PB}, v{S+NS-1}, v82")
        A(f"v_mov_b32 v{PB+1}, s31")
        A(f"v_cvt_pk_bf16_f32 v{PB}, v{PB}, v{PB}")
        A("s_nop 3")
        for k in range(12): A(f"v_mul_f32 v{16+k}, v{16+k}, v82")
        def pcheck(lab, P, sreg):
            A(f"v_cmp_ne_u32 vcc, s31, v{P+1}")
            A(f"s_cbranch_vccz {lab}_ok")
            A("s_mov_b32 s50, 0")
            LB(lab + "_r")
            A("s_sleep 4")
            A(f"buffer_load_dwordx2 v[{P}:{P+1}], v14, s[32:35], {sreg} offen sc1")
            A("s_add_u32 s50, s50, 1")
            A("s_waitcnt vmcnt(0)")
            A(f"v_cmp_ne_u32 vcc, s31, v{P+1}")
            A("s_cmp_gt_u32 s50, 0x40000")
            A(f"s_cbranch_scc1 {lab}_ok")
            A(f"s_cbranch_vccnz {lab}_r")
            LB(lab + "_ok")
        def half(nm, X, PX_, sx, Y, PY, sy, flag):
            LB(nm)
            A("s_waitcnt vmcnt(7)")
            A(f"v_readfirstlane_b32 s48, v{TK}")
            A(f"s_mov_b32 s63, {flag}")
            A(f"s_cmp_ge_u32 s48, {NP}")
            A("s_cbranch_scc1 L_DEXIT")
            claim()
            if stamps: A("s_add_u32 s68, s68, 100"); A("s_addc_u32 s69, s69, 0")
            A(f"s_lshl_b32 {sx}, s48, 7"); A(f"s_add_u32 {sx}, {sx}, s62")
            A("s_and_b32 s49, s48, 15"); A("s_mul_i32 s49, s49, 98304"); A("s_lshr_b32 s48, s48, 4"); A("s_mul_i32 s48, s48, 6144")
            A("s_add_u32 s53, s49, s48"); A("s_add_u32 s53, s53, s61")
            A("s_waitcnt vmcnt(7)")
            pcheck(nm + "_p", PY, sy)
            A(f"buffer_load_dwordx2 v[{PX_}:{PX_+1}], v14, s[32:35], {sx} offen sc1")
            abuildv(PY)
            for k in range(6):
                sg, i = divmod(k, 3)
                A("s_waitcnt vmcnt(7)")
                mf(16 + 4 * i, 68 + 4 * sg, Y + 4 * k, False)
                A(f"buffer_load_dwordx4 v[{X+4*k}:{X+4*k+3}], v2, s[40:43], s53 offen offset:{sg*1536 + i*128} {vf}")
        half("L_DA", SETA, PA, "s51", SETB, PB, "s52", 0)
        half("L_DB", SETB, PB, "s52", SETA, PA, "s51", 1)
        A("s_branch L_DA")
        LB("L_DEXIT")
        if not woh:
            for k in range(8): dma(k)
        DX = 0 if woh else 8
        A("s_cmp_eq_u32 s63, 0")
        A("s_cbranch_scc1 L_DRB")
        def drain(nm, Y, PY, sy):
            LB(nm)
            A(f"s_waitcnt vmcnt({6+DX})")
            pcheck(nm + "_p", PY, sy)
            abuildv(PY)
            for k in range(6):
                sg, i = divmod(k, 3)
                A(f"s_waitcnt vmcnt({5+DX-k})")
                mf(16 + 4 * i, 68 + 4 * sg, Y + 4 * k, False)
        drain("L_DRA", SETA, PA, "s51")
        A("s_branch L_DEND")
        drain("L_DRB", SETB, PB, "s52")
        LB("L_DEND")
    A("s_mov_b32 exec_lo, 0x00ff00ff"); A("s_mov_b32 exec_hi, 0xff00ff00")
    A("s_nop 5")
    for i in range(3):
        A(f"ds_write_b128 v77, v[{16+4*i}:{19+4*i}] offset:{L_PART + 256*i}")
    A("s_mov_b64 exec, -1")
    while issued[0] < NTOT: issue(issued[0], nowait=True)
    A("s_waitcnt lgkmcnt(0)")
    stamp(4)
    A("s_barrier")
    LB("L_WO_PRE")
    A("v_bfe_u32 v1, v0, 1, 1"); A("v_mul_u32_u24 v1, 384, v1"); A("v_lshrrev_b32 v2, 4, v0"); A("v_lshl_add_u32 v1, v2, 4, v1")
    A("v_lshrrev_b32 v2, 2, v0"); A("v_mul_u32_u24 v2, 160, v2")
    A("v_and_b32 v3, 3, v0"); A("v_lshl_add_u32 v2, v3, 3, v2")
    A("s_lshl_b32 s48, s55, 5"); A("v_add_u32 v2, s48, v2")
    A("v_lshlrev_b32 v3, 4, v0")
    A("s_mul_i32 s48, s59, 5"); A("s_add_u32 s48, s48, s55"); A("s_lshl_b32 s48, s48, 5"); A("s_add_u32 s48, s48, s58")
    A("s_lshl_b32 s48, s48, 8"); A(f"s_add_u32 s48, s48, {E2_OFF}")
    A("s_cmp_eq_u32 s55, 4")
    A("s_cbranch_scc1 L_WO_B3")
    A("s_waitcnt vmcnt(0)")
    LB("L_WO_B3")
    stamp(5)
    A("s_barrier")
    for s in range(6):
        A(f"ds_read_b128 v[{96+8*s}:{99+8*s}], v1 offset:{L_OBF + 64*s}")
        A(f"ds_read_b64_tr_b16 v[{100+8*s}:{101+8*s}], v2 offset:{L_WO + 5120*s}")
        A(f"ds_read_b64_tr_b16 v[{102+8*s}:{103+8*s}], v2 offset:{L_WO + 5120*s + 2560}")
    for s in range(6):
        A(f"s_waitcnt lgkmcnt({min(15, 3*(5-s))})")
        mf(8, 96 + 8*s, 100 + 8*s, s == 0)
    A("s_mov_b32 exec_lo, 0xffff"); A("s_mov_b32 exec_hi, 0")
    A("s_nop 5")
    A("v_mov_b32 v9, s31"); A("v_mov_b32 v11, s31")
    A("buffer_store_dwordx4 v[8:11], v3, s[32:35], s48 offen sc1")
    LB("L_fin")
    if stamps:
        stamp(7)
        A("s_mov_b64 exec, 1")
        A("s_waitcnt lgkmcnt(0)")
        A("s_lshl_b32 s48, s2, 3"); A("s_add_u32 s48, s48, s3"); A("s_lshl_b32 s48, s48, 6"); A(f"s_add_u32 s48, s48, {STAMP_OFF}")
        A("v_mov_b32 v1, 0")
        for q in range(4):
            for k in range(4): A(f"v_mov_b32 v{4+k}, s{64+4*q+k}")
            A(f"buffer_store_dwordx4 v[4:7], v1, s[32:35], s48 offen offset:{16*q}")
            A("s_nop 1")
    LB("L_end")
    A("s_endpgm")
    L.append('.section .rodata,"a"'); L.append(".p2align 6"); L.append(f".amdhsa_kernel {KNAME}")
    for d in ["next_free_vgpr 256", "next_free_sgpr 96", "accum_offset 256", "group_segment_fixed_size 0", "kernarg_size 96",
              "user_sgpr_count 2", "user_sgpr_kernarg_segment_ptr 1", "system_sgpr_workgroup_id_x 1", "float_denorm_mode_32 3"]:
        L.append("  .amdhsa_" + d)
    L.append(".end_amdhsa_kernel")
    return "\n".join(L) + "\n"

if __name__ == "__main__":
    ap = argparse.ArgumentParser()
    ap.add_argument("-o", default="k.s")
    ap.add_argument("--R", type=int, default=42)
    ap.add_argument("--amap", default="mix")
    ap.add_argument("--Z", type=int, default=3)
    ap.add_argument("--gfast", type=int, default=0)
    ap.add_argument("--qfast", type=int, default=0)
    ap.add_argument("--ctl", type=int, default=0)
    ap.add_argument("--WH", type=int, default=7)
    ap.add_argument("--WL", type=int, default=4)
    ap.add_argument("--tf", type=int, default=160)
    ap.add_argument("--ts", type=int, default=96)
    ap.add_argument("--MS", default="48,78,108,132,156")
    ap.add_argument("--WK", type=int, default=0)
    ap.add_argument("--WKa", type=int, default=0)
    ap.add_argument("--WKb", type=int, default=0)
    ap.add_argument("--nd", type=int, default=0)
    ap.add_argument("--nv", type=int, default=0)
    ap.add_argument("--fast", type=int, default=0)
    ap.add_argument("--woh", type=int, default=0)
    ap.add_argument("--wopre", type=int, default=0)
    ap.add_argument("--SPN", type=int, default=0)
    ap.add_argument("--SPW", type=int, default=10)
    ap.add_argument("--chk", type=int, default=9)
    ap.add_argument("--lxpre", type=int, default=60)
    ap.add_argument("--qmap", default="xcd")
    ap.add_argument("--g1sh", type=int, default=1)
    ap.add_argument("--g1pre", type=int, default=300)
    ap.add_argument("--omap", default="xcd")
    ap.add_argument("--stamps", action="store_true")
    ap.add_argument("--wo", default="nt")
    ap.add_argument("--w", default="nt")
    ap.add_argument("--WIN", type=int, default=5)
    ap.add_argument("--LK", type=int, default=10)
    ap.add_argument("--qsleep", type=int, default=60)
    ap.add_argument("--dbg", default="")
    ap.add_argument("--HW", type=int, default=4)
    ap.add_argument("--g2pre", type=int, default=480)
    ap.add_argument("--kf", default="nt")
    ap.add_argument("--vf", default="nt")
    a = ap.parse_args()
    open(a.o, "w").write(gen(R=a.R, gfast=a.gfast, qfast=a.qfast, ctl=a.ctl, WH=a.WH, WL=a.WL, tf=a.tf, ts=a.ts, MS=tuple(int(x) for x in a.MS.split(',')), WK=a.WK, WKa=a.WKa, WKb=a.WKb, nd=a.nd, nv=a.nv, fast=a.fast, woh=a.woh, wopre=a.wopre, SPN=a.SPN, SPW=a.SPW, chk=a.chk, Z=a.Z, lxpre=a.lxpre, HW=a.HW, g2pre=a.g2pre, qmap=a.qmap, g1sh=a.g1sh, g1pre=a.g1pre, amap=a.amap, omap=a.omap, stamps=a.stamps, wo_flags=a.wo, w_flags=a.w, WIN=a.WIN, LK=a.LK,
                             qsleep=a.qsleep, dbg=tuple(a.dbg.split(',')), kf=a.kf.replace('+', ' '), vf=a.vf.replace('+', ' ')))
```

```python
import sys, argparse
KNAME = "recurrent_scan__gqa_block_cached__glu_gated_bilinear__decode_kernel"
HEADER = open("recurrent_scan__gqa_block_cached__glu_gated_bilinear__decode.s.ref").read().split("; Override launch")[0]

GEN_OFF = 0
LX_OFF = 4096
QS_OFF = LX_OFF + 256 * 128
E1_OFF = QS_OFF + 32 * 3 * 8192
E2_OFF = E1_OFF + 256 * 1024
G1_OFF = E2_OFF + 40 * 32 * 256
G2_OFF = G1_OFF + 24 * 10 * 2048
CNT_OFF = G2_OFF + 40 * 24 * 256
PX_OFF = CNT_OFF + 64 * 128
XT_OFF = PX_OFF + 64 * 96 * 128
WS_USED = XT_OFF + 24 * 128
STAMP_OFF = 4 << 20
WS_BYTES = 402653184
L_XN = 0
L_Q = 2048
L_ML = 2432
L_W = 2496
L_PRG = 2528
L_MODE = 2532
L_OBF = 2560
L_HS = 3328
L_PART = 3840
L_PP = 9984
L_WO = 11520
LDS_BYTES = L_WO + 30720
TAGC = 0x9E3779B1
LOG2E = 0x3FB8AA3B
SCALE = 0x3D93CD3A
DPPF = "row_mask:0xf bank_mask:0xf"

DOC = """
Fused single-launch decode block. 256 workgroups (one per CU) x 8 waves.
 workgroup (h, j): head h, batch b = j>>2, key quarter j&3.
 waves 4..7 (streamers): 256 keys each. K then V streamed straight to registers (nt loads, 5 in flight),
   QK^T and PV on MFMA 16x16x32 with a diagonal operand so that every load covers whole 128-B lines;
   scores are rounded like the reference (bf16(q.k), bf16(*scale)), true max subtraction.
 waves 0..2: layernorm + 80-row slice of the q projection, partials exchanged inside the head group.
 wave 3: gate/up slice or w_down slice of the GLU branch.   wave 0: softmax statistics + head combine.
 waves 1,3: gather o (per batch).  5 waves: 80-column slice of Wo.  wave 2 of 40 workgroups: final reduce.
 Hand-offs are 16-byte granules carrying a per-launch tag (generation word in d_ws + constant), so no
 ordering or clearing is needed. XCD-local (L2) stores are only a shortcut: the q partials are written
 through as well as soon as a foreign XCC id is seen or the gather is late, and every other producer takes
 the shortcut only after it has seen, in this launch, that all its readers report its own XCC id.
"""

def gen(R=42, amap="xcd", omap="xcd1", qmap="xcd7", g1sh=1, g2sh=0, g1pre=120, lxpre=100, stamps=False, wo_flags="nt", w_flags="nt", red_base=216, WIN=5, HW=4, LK=10, g2pre=480,
        qsleep=40, dbg=(), kf='nt', vf='nt', Z=3, chk=9, woh=0, wopre=0, SPN=0, SPW=10, fast=0, nd=0, nv=0, WK=0, WKa=0, WKb=0, ctl=0, WH=7, WL=4, MS=(48, 78, 108, 132, 156), tf=160, ts=96, qfast=0, qto=6, gfast=0, BN=0, WB=6, e2dual=0, sfirst=0, cpf=0, IB=0):
    L = []
    A = lambda s: L.append("  " + s)
    LB = lambda s: L.append(s + ":")
    C = lambda s: L.append("  ; " + s)
    def stamp(k):
        if stamps:
            A(f"s_memrealtime s[{64+2*k}:{65+2*k}]")
    def srd(d, plo, size):
        A(f"s_mov_b32 s{d}, s{plo}"); A(f"s_mov_b32 s{d+1}, s{plo+1}")
        A(f"s_mov_b32 s{d+2}, {size}"); A(f"s_mov_b32 s{d+3}, 0x20000")
    def amasks(base, tmp):
        A(f"v_and_b32 v{tmp}, 1, v0")
        A(f"v_lshlrev_b32 v{tmp}, 4, v{tmp}")
        A("s_mov_b32 s48, 0xffff")
        A(f"v_lshlrev_b32_e64 v{tmp}, v{tmp}, s48")
        for r in range(4):
            A(f"s_mov_b32 s48, 0x{0x03030303 << (2*r):08x}")
            A("s_mov_b32 s49, s48")
            A(f"v_cndmask_b32_e64 v{base+r}, 0, v{tmp}, s[48:49]")
    def xrow_reduce(op, v, t):
        A(f"v_mov_b32 v{t}, v{v}"); A("s_nop 1")
        A(f"v_permlane16_swap_b32 v{t}, v{v}")
        A(f"{op} v{v}, v{v}, v{t}")
        A(f"v_mov_b32 v{t}, v{v}"); A("s_nop 1")
        A(f"v_permlane32_swap_b32 v{t}, v{v}")
        A(f"{op} v{v}, v{v}, v{t}")
    def rne(v):
        A(f"v_cvt_pk_bf16_f32 v{v}, v{v}, v{v}")
        A(f"v_and_b32 v{v}, 0xffff0000, v{v}")
    def epilogue(P, Q, G, kind):
        for a in (P, Q, P + 1, Q + 1):
            A(f"v_permlane32_swap_b32 v{a}, v{a+2}")
        A(f"v_mov_b32 v{G+1}, s31"); A(f"v_mov_b32 v{G+3}, s31")
        lo = lambda d, x: A(f"v_add_f32_dpp v{d}, v{x+2}, v{x} row_shl:8 {DPPF}")
        hi = lambda d, x: A(f"v_add_f32_dpp v{d}, v{x}, v{x+2} row_shr:8 {DPPF}")
        if kind == "b":
            lo(G, P); lo(G + 2, P + 1); hi(G, Q); hi(G + 2, Q + 1)
        else:
            lo(G, P); lo(G + 2, Q); hi(G, P + 1); hi(G + 2, Q + 1)
    def poll(label, loads, tagregs, tmp, sleep=0, pre=0):
        while pre > 0:
            A(f"s_sleep {min(pre, 127)}"); pre -= 127
        if label in dbg:
            for ld in loads: A(ld)
            A("s_waitcnt vmcnt(0)")
            return
        A("s_mov_b32 s50, 0")
        LB(label)
        for ld in loads: A(ld)
        A("s_add_u32 s50, s50, 1")
        A("s_waitcnt vmcnt(0)")
        A(f"v_xor_b32 v{tmp}, s31, v{tagregs[0]}")
        rest = list(tagregs[1:])
        while rest:
            if len(rest) >= 2:
                A(f"v_xor_b32 v{tmp+1}, s31, v{rest[0]}"); A(f"v_xor_b32 v{tmp+2}, s31, v{rest[1]}")
                A(f"v_or3_b32 v{tmp}, v{tmp}, v{tmp+1}, v{tmp+2}"); rest = rest[2:]
            else:
                A(f"v_xor_b32 v{tmp+1}, s31, v{rest[0]}"); A(f"v_or_b32 v{tmp}, v{tmp}, v{tmp+1}"); rest = rest[1:]
        A(f"v_cmp_ne_u32 vcc, 0, v{tmp}")
        A("s_cmp_gt_u32 s50, 0x40000")
        A(f"s_cbranch_scc1 {label}_x")
        if sleep:
            A(f"s_cbranch_vccz {label}_x")
            A(f"s_sleep {sleep}")
            A(f"s_branch {label}")
        else:
            A(f"s_cbranch_vccnz {label}")
        LB(label + "_x")
    def wgmap(kind, sh, sj):
        if kind == "mix":
            A("s_bfe_u32 s48, s2, 0x20001")
            A("s_lshr_b32 s49, s2, 3"); A(f"s_lshl_b32 s{sh}, s48, 3"); A(f"s_sub_u32 s{sh}, s49, s{sh}"); A(f"s_and_b32 s{sh}, s{sh}, 31")
            A(f"s_and_b32 s{sj}, s2, 1"); A(f"s_lshl2_add_u32 s{sj}, s{sj}, s48")
        elif kind.startswith("xcd"):
            k = int(kind[3:] or 0)
            if k:
                A(f"s_add_u32 s48, s2, {k}"); A("s_and_b32 s48, s48, 7")
            else:
                A("s_and_b32 s48, s2, 7")
            A("s_lshr_b32 s49, s2, 3"); A(f"s_lshr_b32 s{sh}, s49, 3")
            A(f"s_lshl2_add_u32 s{sh}, s48, s{sh}"); A(f"s_and_b32 s{sj}, s49, 7")
        else:
            A(f"s_lshr_b32 s{sh}, s2, 3"); A(f"s_and_b32 s{sj}, s2, 7")
    mf = lambda d, a, b, first: A(f"v_mfma_f32_16x16x32_bf16 v[{d}:{d+3}], v[{a}:{a+3}], v[{b}:{b+3}], {'0' if first else f'v[{d}:{d+3}]'}")

    L.append(HEADER.rstrip("\n"))
    L.append(f"; @launch grid=(256,1,1) block=(512,1,1) lds={LDS_BYTES}")
    L.append('.amdgcn_target "amdgcn-amd-amdhsa--gfx950"')
    for c in DOC.strip("\n").split("\n"): L.append("; " + c)
    L.append(".text"); L.append(f".globl {KNAME}"); L.append(".p2align 8"); L.append(f".type {KNAME},@function")
    LB(KNAME)
    A("s_cmp_ge_u32 s2, 256")
    A("s_cbranch_scc1 L_end")
    stamp(0)
    A("s_load_dwordx16 s[4:19], s[0:1], 0")
    A("s_load_dwordx8 s[20:27], s[0:1], 64")
    A("v_lshrrev_b32 v1, 6, v0")
    A("v_and_b32 v0, 63, v0")
    A("v_readfirstlane_b32 s3, v1")
    wgmap(amap, 28, 29)
    A("s_lshr_b32 s30, s29, 2")
    A("s_cmp_lt_u32 s3, 4")
    A("s_cbranch_scc1 L_HELP")
    RB = 84
    NS = 16 - Z
    NP = 16 * Z
    SETA, SETB, PA, PB, TK = 84, 28, 8, 10, 12
    loads = []
    for ten in ("K", "V"):
        for t in range(16 if ten == "K" else NS):
            for s in range(2):
                for i in range(3):
                    loads.append((ten, t, s, i))
    ops = [("L", k) for k in range(len(loads))]
    if Z:
        ops.insert(len(ops) - 7, ("A", 0))
    elif not woh:
        ops += [("D", k) for k in range(nd, 8)]
        for k in range(nd):
            ops.insert(len(loads) - nv + k, ("D", k))
    pos = {k: p for p, (kind, k) in enumerate(ops) if kind == "L"}
    def slot(k):
        if Z and k >= len(loads) - 6: return SETB + 4 * (k - (len(loads) - 6))
        return RB + 4 * (k % R)
    issued = [0]
    ctl_on = [False]
    def setflags():
        if ctl and ctl_on[0]:
            A("s_cmp_eq_u32 s57, 2")
    NTOT = len(ops)
    def winf(p):
        if WK and WKa <= p < WKb: return WK
        return SPW if (SPN and p >= len(loads) - SPN) else WIN
    def dma(k):
        A("s_mov_b32 exec_hi, 0x0fffffff")
        A(f"s_add_u32 m0, s56, {960*k}")
        if k: A("s_add_u32 s54, s54, 7680")
        else: A("s_nop 0")
        if "nowo" not in dbg: A(f"buffer_load_dwordx4 v76, s[44:47], s54 offen {wo_flags} lds")
        else: A("buffer_load_dword v78, v76, s[44:47], 0 offen")
        A("s_mov_b32 exec_hi, -1")
    def claim():
        A("s_mov_b64 exec, 1")
        A(f"v_mov_b32 v{TK}, 1")
        A(f"buffer_atomic_add v{TK}, v13, s[32:35], s60 offen sc0" + ("" if "aloc" in dbg else " sc1"))
        A("s_mov_b64 exec, -1")
    def issue(p, nowait=False):
        if BN and WIN <= p < BN:
            A(f"s_waitcnt vmcnt({WB-1})")
            A(f"s_cbranch_vccnz L_w{p}")
            A(f"s_waitcnt vmcnt({WIN-1})")
            LB(f"L_w{p}")
        elif ctl and ctl_on[0] and p < len(loads) - SPN and not nowait:
            A(f"s_waitcnt vmcnt({WH-1})")
            A(f"s_cbranch_vccnz L_w{p}")
            A(f"s_waitcnt vmcnt({WIN-1})")
            if WL < WIN:
                A(f"s_cbranch_scc0 L_w{p}")
                A(f"s_waitcnt vmcnt({WL-1})")
            LB(f"L_w{p}")
        elif p >= WIN and not nowait: A(f"s_waitcnt vmcnt({winf(p)-1})")
        kind, idx = ops[p]
        issued[0] += 1
        if kind == "D":
            dma(idx); return
        if kind == "A":
            A("s_mov_b32 s50, 0")
            LB("L_GATE")
            A(f"ds_read_b64 v[82:83], v81 offset:{L_W}")
            A("s_add_u32 s50, s50, 1")
            A("s_waitcnt lgkmcnt(0)")
            A("v_cmp_eq_u32 vcc, 0, v83")
            A("s_cmp_gt_u32 s50, 0x40000")
            A("s_cbranch_scc1 L_GATE_x")
            A("s_cbranch_vccz L_GATE_x")
            A("s_sleep 4")
            A("s_branch L_GATE")
            LB("L_GATE_x")
            stamp(6)
            claim(); return
        ten, t, s, i = loads[idx]
        r = slot(idx)
        if ten == "K":
            A(f"buffer_load_dwordx4 v[{r}:{r+3}], v1, s[36:39], s52 offen offset:{s*3072 + i*128} {kf}")
            if s == 1 and i == 2 and t < 15:
                A("s_add_u32 s52, s52, 6144"); setflags()
        else:
            A(f"buffer_load_dwordx4 v[{r}:{r+3}], v2, s[40:43], s53 offen offset:{s*1536 + i*128} {vf}")
            if s == 1 and i == 2 and t < 15:
                A("s_add_u32 s53, s53, 6144"); setflags()
    A("s_sub_u32 s55, s3, 4")
    A("v_lshrrev_b32 v4, 5, v0"); A("v_bfe_u32 v5, v0, 2, 2"); A("v_lshl_add_u32 v4, v4, 2, v5")
    A("v_mul_u32_u24 v1, 384, v4")
    A("v_and_b32 v5, 3, v0"); A("v_bfe_u32 v6, v0, 4, 1"); A("v_lshl_add_u32 v5, v6, 2, v5")
    A("v_lshlrev_b32 v3, 4, v5")
    A("v_add_u32 v1, v1, v3")
    A("s_lshl_b32 s48, s30, 5"); A("s_add_u32 s48, s48, s28"); A("s_lshl_b32 s48, s48, 2")
    A("s_and_b32 s49, s29, 3"); A("s_add_u32 s48, s48, s49"); A("s_lshl_b32 s48, s48, 2"); A("s_add_u32 s48, s48, s55")
    A("s_mul_i32 s52, s48, 98304")
    A("s_mov_b32 s53, s52")
    A("s_mov_b32 s38, 100663296"); A("s_mov_b32 s39, 0x20000")
    A("s_waitcnt lgkmcnt(0)")
    A("s_mov_b32 s36, s6"); A("s_mov_b32 s37, s7")
    if "st_first" in dbg: stamp(6)
    for idx in range(max(WIN, IB)): issue(idx, nowait=True)
    if "st_first" in dbg:
        A("s_waitcnt vmcnt(4)"); stamp(3)
    if BN:
        A("s_bitcmp1_b32 s2, 2"); A("s_cselect_b64 vcc, -1, 0")
    A("s_branch L_STREAM")

    LB("L_HELP")
    A("v_lshrrev_b32 v3, 5, v0")
    A("v_and_b32 v4, 31, v0")
    A("v_mul_u32_u24 v3, 1280, v3")
    A("v_lshl_add_u32 v1, v4, 4, v3")
    A("v_lshl_add_u32 v2, v4, 3, v3")
    A("v_lshrrev_b32 v5, 3, v0")
    A("v_and_b32 v6, 7, v0")
    A("v_lshlrev_b32 v6, 4, v6")
    wgmap(qmap, 62, 63)
    A("s_lshr_b32 s49, s2, 3")
    A("s_sub_u32 s51, s49, 15"); A("s_cmp_ge_u32 s49, 15"); A("s_cselect_b32 s49, s51, s49")
    A("s_mul_i32 s57, s49, 13108"); A("s_lshr_b32 s57, s57, 16")
    A("s_mul_i32 s52, s57, 5"); A("s_sub_u32 s52, s49, s52")
    A("s_mul_i32 s55, s63, 160"); A("s_lshl_b32 s54, s52, 8")
    A("s_cmp_eq_u32 s3, 3")
    A("s_cselect_b32 s55, s54, s55")
    A("v_mul_u32_u24 v7, 12288, v5"); A("v_add_u32 v7, v7, v6")
    A(f"s_mul_i32 s53, s63, {80*12288}"); A("s_mul_i32 s54, s62, 384"); A("s_add_u32 s53, s53, s54")
    A("s_lshl_b32 s54, s3, 7"); A("s_add_u32 s53, s53, s54")
    A("s_mov_b32 s46, 2560"); A("s_mov_b32 s47, 0x20000")
    A(f"s_mov_b32 s38, {640*6144*2}"); A("s_mov_b32 s39, 0x20000")
    A("s_waitcnt lgkmcnt(0)")
    A("s_mov_b32 s44, s4"); A("s_mov_b32 s45, s5")
    A("buffer_load_dwordx4 v[8:11], v1, s[44:47], 0 offen")
    A("buffer_load_dwordx4 v[12:15], v1, s[44:47], 0 offen offset:512")
    A("buffer_load_dwordx2 v[16:17], v2, s[44:47], 0 offen offset:1024")
    A("buffer_load_dwordx2 v[18:19], v2, s[44:47], s55 offen")
    W = 96
    A("s_mov_b32 s36, s10"); A("s_mov_b32 s37, s11")
    A("s_cmp_eq_u32 s3, 3")
    A("s_cbranch_scc1 " + ("L_CPF" if cpf else "L_LN"))
    for t in range(10):
        if "nowq" in dbg: break
        A(f"buffer_load_dwordx4 v[{W+4*t}:{W+4*t+3}], v7, s[36:39], s53 offen {w_flags}")
        if t < 9: A("s_add_u32 s53, s53, 98304")
    if cpf:
        A("s_branch L_LN")
        LB("L_CPF")
        A(f"s_cmp_ge_u32 s2, {cpf}")
        A("s_cbranch_scc1 L_LN")
        A("s_getpc_b64 s[48:49]")
        LB("L_CPF_PC")
        A(f"s_sub_u32 s48, s48, L_CPF_PC-{KNAME}")
        A("s_subb_u32 s49, s49, 0")
        A("v_lshlrev_b32 v20, 6, v0")
        for k in range(5):
            A(f"v_min_u32 v21, L_code_end-{KNAME}, v20")
            A(f"global_load_dword v{24+k}, v21, s[48:49]")
            if k < 4: A("v_add_u32 v20, 4096, v20")
    LB("L_LN")
    A(f"s_load_dword s31, s[26:27], {GEN_OFF}")
    srd(32, 26, WS_BYTES)
    amasks(88, 20)
    A("s_cmp_eq_u32 s3, 3")
    A("s_cselect_b32 s54, 1024, 0")
    A("v_lshrrev_b32 v21, 5, v0"); A("v_lshlrev_b32 v21, 9, v21"); A("v_and_b32 v22, 1, v0"); A("v_lshl_add_u32 v21, v22, 8, v21")
    A("v_bfe_u32 v22, v0, 1, 4"); A("v_lshl_add_u32 v21, v22, 2, v21"); A("v_add_u32 v21, s54, v21")
    A("v_lshl_add_u32 v22, v5, 6, s54")
    A("v_mov_b32 v23, 0"); A("v_lshlrev_b32 v24, 2, v0"); A("v_and_b32 v24, 127, v24")
    A(f"ds_write_b32 v24, v23 offset:{L_ML}")
    A("s_cbranch_scc0 L_LN_GO")
    A("s_waitcnt vmcnt(0)")
    LB("L_LN_GO")
    A("s_waitcnt vmcnt(10)" if "nowq" not in dbg else "s_waitcnt vmcnt(0)")
    stamp(5)
    U = 24
    for k in range(10):
        A(f"v_lshlrev_b32 v{U+2*k}, 16, v{8+k}")
        A(f"v_and_b32 v{U+2*k+1}, 0xffff0000, v{8+k}")
    def half_reduce(v, t):
        for sh in (8, 4, 2, 1):
            A("s_nop 1")
            A(f"v_add_f32_dpp v{v}, v{v}, v{v} row_ror:{sh} {DPPF}")
        A(f"v_mov_b32 v{t}, v{v}"); A("s_nop 1")
        A(f"v_permlane16_swap_b32 v{t}, v{v}")
        A(f"v_add_f32 v{v}, v{v}, v{t}")
    pk = lambda r: f"v[{r}:{r+1}]"
    A(f"v_pk_add_f32 v[60:61], {pk(U)}, {pk(U+2)}")
    for k in range(2, 10): A(f"v_pk_add_f32 v[60:61], v[60:61], {pk(U+2*k)}")
    A("v_add_f32 v60, v60, v61")
    half_reduce(60, 61)
    A("v_mul_f32 v60, 0x3acccccd, v60")
    for k in range(10):
        A(f"v_pk_add_f32 {pk(U+2*k)}, {pk(U+2*k)}, v[60:61] op_sel_hi:[1,0] neg_lo:[0,1] neg_hi:[0,1]")
    A(f"v_pk_mul_f32 v[62:63], {pk(U)}, {pk(U)}")
    for k in range(1, 10): A(f"v_pk_fma_f32 v[62:63], {pk(U+2*k)}, {pk(U+2*k)}, v[62:63]")
    A("v_add_f32 v62, v62, v63")
    half_reduce(62, 63)
    A("v_mul_f32 v62, 0x3acccccd, v62")
    rne(60); rne(62)
    A("v_add_f32 v62, 0x3727c5ac, v62")
    rne(62)
    A("v_sqrt_f32 v62, v62")
    A("v_lshlrev_b32 v56, 16, v18"); A("v_and_b32 v57, 0xffff0000, v18")
    rne(62)
    A("v_rcp_f32 v62, v62")
    A("v_lshlrev_b32 v58, 16, v19"); A("v_and_b32 v59, 0xffff0000, v19")
    for k in range(4): A(f"v_sub_f32 v{56+k}, v{56+k}, v60")
    A("v_cvt_pk_bf16_f32 v18, v56, v57"); A("v_cvt_pk_bf16_f32 v19, v58, v59")
    A("v_lshlrev_b32 v56, 16, v18"); A("v_and_b32 v57, 0xffff0000, v18")
    A("v_lshlrev_b32 v58, 16, v19"); A("v_and_b32 v59, 0xffff0000, v19")
    for k in range(4): A(f"v_mul_f32 v{56+k}, v{56+k}, v62")
    for k in range(4):
        A(f"v_cvt_pk_bf16_f32 v{56+k}, v{56+k}, v{56+k}")
        A(f"ds_write_b32 v21, v{56+k} offset:{L_XN + 64*k}")
    X = 24
    for q in range(4):
        for b in range(2):
            A(f"ds_read_b128 v[{X+16*b+4*q}:{X+16*b+4*q+3}], v22 offset:{L_XN + 512*b + 16*q}")
    A("v_and_b32 v18, 7, v0"); A("v_lshlrev_b32 v18, 6, v18")
    A("v_bfe_u32 v19, v0, 4, 1"); A("v_lshl_add_u32 v18, v19, 5, v18")
    A("v_lshrrev_b32 v19, 5, v0"); A("v_lshl_add_u32 v18, v19, 4, v18")
    A("v_bfe_u32 v20, v0, 3, 1")
    A("v_lshlrev_b32 v19, 4, v0")
    A("s_waitcnt lgkmcnt(0)")
    A(f"s_add_u32 s31, s31, 0x{TAGC:08x}")
    A("s_cmp_eq_u32 s3, 3")
    A("s_cbranch_scc1 L_H_B1")
    DP, DQ, AA = 64, 68, 72
    def abuild(t):
        for b in range(2):
            for r in range(4):
                A(f"v_and_b32 v{AA+4*b+r}, v{X+16*b+t}, v{88+r}")
    for t in range(10):
        abuild(t)
        A(f"s_waitcnt vmcnt({9-t})")
        mf(DP, AA, W + 4*t, t == 0)
        mf(DQ, AA + 4, W + 4*t, t == 0)
    stamp(6)
    if "noqx" in dbg: A("s_branch L_H_B1")
    A("s_mul_i32 s54, s62, 3"); A("s_add_u32 s54, s54, s3"); A("s_lshl_b32 s54, s54, 13")
    A("s_lshl_b32 s60, s63, 9"); A("s_add_u32 s54, s54, s60"); A(f"s_add_u32 s54, s54, {QS_OFF}")
    A("s_mul_i32 s53, s28, 3"); A("s_add_u32 s53, s53, s3"); A("s_lshl_b32 s53, s53, 13")
    A("s_lshl_b32 s60, s30, 12"); A("s_add_u32 s53, s53, s60"); A(f"s_add_u32 s53, s53, {QS_OFF}")
    A("v_lshl_add_u32 v21, v20, 12, v18")
    epilogue(DP, DQ, 80, "b")
    lds_ = [f"buffer_load_dwordx4 v[{24+4*k}:{27+4*k}], v19, s[32:35], s53 offen offset:{k*1024} sc1" for k in range(4)]
    if qfast:
        assert qmap == amap
        A("s_getreg_b32 s61, hwreg(HW_REG_XCC_ID)"); A("s_and_b32 s61, s61, 15"); A("s_xor_b32 s61, s61, s31")
        A("v_mov_b32 v83, s61")
        A("buffer_store_dwordx4 v[80:83], v21, s[32:35], s54 offen")
        pre = qsleep
        while pre > 0:
            A(f"s_sleep {min(pre, 127)}"); pre -= 127
        A("s_mov_b32 s50, 0")
        A("s_mov_b32 s57, 0")
        LB("L_QPOLL")
        for ld in lds_: A(ld)
        A("s_add_u32 s50, s50, 1")
        A("s_waitcnt vmcnt(0)")
        for k in range(4):
            A(f"v_xor_b32 v{25+4*k}, s31, v{25+4*k}"); A(f"v_xor_b32 v{27+4*k}, s61, v{27+4*k}")
        A("v_or3_b32 v8, v25, v29, v33"); A("v_or3_b32 v9, v27, v31, v35")
        A("v_or_b32 v8, v8, v37"); A("v_or_b32 v9, v9, v39")
        A("v_lshrrev_b32 v10, 4, v9"); A("v_or_b32 v8, v8, v10")
        A("v_cmp_ne_u32 vcc, 0, v8")
        A("s_cbranch_vccz L_QPOLL_ok")
        A(f"s_cmp_lg_u32 s50, {qto}")
        A("s_cbranch_scc1 L_QPOLL_n")
        A("buffer_store_dwordx4 v[80:83], v21, s[32:35], s54 offen sc1")
        LB("L_QPOLL_n")
        A("s_cmp_gt_u32 s50, 0x40000")
        A("s_cbranch_scc1 L_QPOLL_x")
        A("s_sleep 12")
        A("s_branch L_QPOLL")
        LB("L_QPOLL_ok")
        A("v_cmp_ne_u32 vcc, 0, v9")
        A("s_mov_b32 s57, 1")
        A("s_cbranch_vccz L_QPOLL_x")
        A("s_mov_b32 s57, 0")
        A("buffer_store_dwordx4 v[80:83], v21, s[32:35], s54 offen sc1")
        LB("L_QPOLL_x")
    else:
        A("buffer_store_dwordx4 v[80:83], v21, s[32:35], s54 offen " + ("" if "qplain" in dbg else "sc1"))
        poll("L_QPOLL", lds_, [25 + 2*k for k in range(8)], 8, sleep=12, pre=qsleep)
    for k in range(1, 4):
        A(f"v_add_f32 v24, v24, v{24+4*k}"); A(f"v_add_f32 v26, v26, v{26+4*k}")
    A("v_and_b32 v21, 31, v0"); A("v_lshlrev_b32 v21, 2, v21")
    A("v_lshrrev_b32 v22, 5, v0"); A("v_lshl_add_u32 v21, v22, 1, v21")
    A("v_permlane32_swap_b32 v24, v26")
    A("s_lshl_b32 s54, s3, 7")
    A("v_add_f32 v24, v24, v26")
    A("v_add_u32 v21, s54, v21")
    A("v_cvt_pk_bf16_f32 v24, v24, v24")
    A(f"ds_write_b16 v21, v24 offset:{L_Q}")
    A("s_waitcnt lgkmcnt(0)")
    LB("L_H_B1")
    stamp(1)
    A("s_barrier")
    wgmap(omap, 58, 59)
    A("s_cmp_eq_u32 s3, 0")
    A("s_cbranch_scc1 L_H0")
    A("s_cmp_eq_u32 s3, 2")
    A("s_cbranch_scc1 L_H2_PRE")
    A("s_cmp_eq_u32 s3, 1")
    A("s_cbranch_scc1 L_E1G")
    if "noglu" in dbg: A("s_branch L_E1G")
    A("s_cmp_ge_u32 s2, 240")
    A("s_cbranch_scc1 L_E1G")
    D4 = [64, 68, 224, 228]
    A("s_cmp_ge_u32 s2, 120")
    A("s_cbranch_scc1 L_G2")
    A(f"s_add_u32 s48, s2, {g1sh}"); A("s_and_b32 s48, s48, 7"); A("s_mul_i32 s51, s48, 3"); A("s_add_u32 s51, s51, s57")
    srd(36, 16, 640 * 1536 * 2); srd(40, 18, 640 * 1536 * 2)
    A("v_mul_u32_u24 v7, 3072, v5"); A("v_add_u32 v7, v7, v6")
    A(f"s_mul_i32 s53, s52, {128*3072}"); A("s_lshl_b32 s54, s51, 7"); A("s_add_u32 s53, s53, s54")
    LAG = HW // 2
    def g1c(t):
        abuild(t)
        A("s_nop 1")
        for mat in range(2):
            for b in range(2):
                mf(D4[2*mat+b], AA + 4*b, W + 8*t + 4*mat, t == 0)
    for t in range(16):
        if t >= LAG: A(f"s_waitcnt vmcnt({2*LAG-2})")
        A(f"buffer_load_dwordx4 v[{W+8*t}:{W+8*t+3}], v7, s[36:39], s53 offen {w_flags}")
        A(f"buffer_load_dwordx4 v[{W+8*t+4}:{W+8*t+7}], v7, s[40:43], s53 offen {w_flags}")
        if t < 15: A("s_add_u32 s53, s53, 24576")
        if t >= LAG: g1c(t - LAG)
    if gfast:
        assert g1sh == g2sh
        A("s_lshl_b32 s54, s51, 7"); A(f"s_add_u32 s54, s54, {XT_OFF}")
        A("s_mov_b64 exec, 31")
        A("buffer_load_dwordx2 v[8:9], v19, s[32:35], s54 offen sc1")
        A("s_mov_b64 exec, -1")
        A("s_getreg_b32 s61, hwreg(HW_REG_XCC_ID)"); A("s_and_b32 s61, s61, 15")
    A("s_waitcnt vmcnt(0)")
    for t in range(16 - LAG, 16): g1c(t)
    A(f"s_mul_i32 s53, s51, {5*2048}"); A(f"s_add_u32 s53, s53, {G1_OFF}")
    A("s_lshl_b32 s54, s52, 11"); A("s_add_u32 s54, s54, s53")
    A("v_lshl_add_u32 v21, v20, 9, v18")
    A("s_nop 3")
    epilogue(D4[0], D4[1], 80, "b")
    epilogue(D4[2], D4[3], 84, "b")
    gf = "" if "gplain" in dbg else "sc1"
    if gfast:
        A("s_mov_b64 exec, 31")
        A("v_xor_b32 v8, s61, v8"); A("v_xor_b32 v9, s31, v9"); A("v_or_b32 v8, v8, v9")
        A("v_cmp_ne_u32 vcc, 0, v8")
        A("s_mov_b64 exec, -1")
        A("s_cbranch_vccnz L_G1_S")
        A(f"buffer_store_dwordx4 v[80:83], v21, s[32:35], s54 offen")
        A(f"buffer_store_dwordx4 v[84:87], v21, s[32:35], s54 offen offset:1024")
        A("s_branch L_E1G")
        LB("L_G1_S")
    A(f"buffer_store_dwordx4 v[80:83], v21, s[32:35], s54 offen {gf}")
    A(f"buffer_store_dwordx4 v[84:87], v21, s[32:35], s54 offen offset:1024 {gf}")
    A("s_branch L_E1G")
    LB("L_G2")
    A(f"s_add_u32 s48, s2, {g2sh}"); A("s_and_b32 s48, s48, 7"); A("s_mul_i32 s56, s48, 3"); A("s_add_u32 s56, s56, s57")
    if gfast:
        A("s_getreg_b32 s61, hwreg(HW_REG_XCC_ID)"); A("s_and_b32 s61, s61, 15")
        A("s_lshl_b32 s54, s56, 7"); A("s_lshl_b32 s53, s52, 4"); A("s_add_u32 s54, s54, s53"); A(f"s_add_u32 s54, s54, {XT_OFF}")
        A("v_mov_b32 v8, s61"); A("v_mov_b32 v9, s31")
        A("s_mov_b64 exec, 1")
        A("buffer_store_dwordx2 v[8:9], v19, s[32:35], s54 offen sc1")
        A("s_mov_b64 exec, -1")
    srd(44, 20, 1536 * 640 * 2)
    A("v_mul_u32_u24 v7, 1280, v5"); A("v_add_u32 v7, v7, v6")
    A(f"s_mul_i32 s53, s56, {64*1280}"); A("s_lshl_b32 s54, s52, 8"); A("s_add_u32 s53, s53, s54")
    for t in range(8):
        if t >= LAG: A(f"s_waitcnt vmcnt({2*LAG-2})")
        A(f"buffer_load_dwordx4 v[{W+8*t}:{W+8*t+3}], v7, s[44:47], s53 offen {w_flags}")
        A(f"buffer_load_dwordx4 v[{W+8*t+4}:{W+8*t+7}], v7, s[44:47], s53 offen offset:128 {w_flags}")
        if t < 7: A("s_add_u32 s53, s53, 10240")
    A(f"s_mul_i32 s53, s56, {5*2048}"); A(f"s_add_u32 s53, s53, {G1_OFF}")
    A("s_add_u32 s60, s53, 4096"); A("s_add_u32 s61, s53, 8192")
    quads = [W + 64 + 4*k for k in range(10)]
    sof = ["s53", "s60", "s61"]
    lds_ = [f"buffer_load_dwordx4 v[{quads[k]}:{quads[k]+3}], v19, s[32:35], {sof[k>>2]} offen offset:{(k&3)*1024} sc1" for k in range(10)]
    poll("L_G1POLL", lds_, [q + 1 for q in quads] + [q + 3 for q in quads], 8, sleep=100, pre=g1pre)
    for k in range(2, 10):
        base = quads[k & 1]
        A(f"v_add_f32 v{base}, v{base}, v{quads[k]}")
        A(f"v_add_f32 v{base+2}, v{base+2}, v{quads[k]+2}")
    g0, u0 = quads[0], quads[1]
    for e in range(2):
        rne(g0 + 2*e); rne(u0 + 2*e)
        A(f"v_mul_f32 v{g0+2*e}, v{g0+2*e}, v{u0+2*e}")
        A(f"v_cvt_pk_bf16_f32 v{8+e}, v{g0+2*e}, v{g0+2*e}")
    A("v_lshlrev_b32 v21, 3, v0")
    A(f"ds_write_b64 v21, v[8:9] offset:{L_HS}")
    A("v_lshlrev_b32 v21, 2, v5")
    for b in range(2):
        for t in range(8):
            A(f"ds_read_b32 v{X+16*b+t}, v21 offset:{L_HS + 256*b + 32*t}")
    A("s_waitcnt lgkmcnt(0)")
    for t in range(8):
        abuild(t)
        A("s_nop 1")
        for cg in range(2):
            for b in range(2):
                mf(D4[2*cg+b], AA + 4*b, W + 8*t + 4*cg, t == 0)
    A("v_bfe_u32 v21, v0, 1, 2"); A("v_mul_u32_u24 v21, 6144, v21")
    A("v_and_b32 v22, 0x7f, v18"); A("v_lshl_add_u32 v21, v22, 1, v21"); A("v_lshl_add_u32 v21, v20, 4, v21")
    A(f"s_mul_i32 s53, s52, {8*6144}"); A("s_lshl_b32 s54, s56, 8"); A("s_add_u32 s53, s53, s54")
    A(f"s_add_u32 s53, s53, {G2_OFF}"); A(f"s_add_u32 s54, s53, {4*6144}")
    epilogue(D4[0], D4[1], 80, "e")
    epilogue(D4[2], D4[3], 84, "e")
    g2f = "" if "g2plain" in dbg else "sc1"
    A(f"buffer_store_dwordx4 v[80:83], v21, s[32:35], s53 offen {g2f}")
    A(f"buffer_store_dwordx4 v[84:87], v21, s[32:35], s54 offen {g2f}")
    LB("L_E1G")
    if ctl:
        assert not Z
        A("s_cmp_eq_u32 s3, 1")
        A("s_cbranch_scc0 L_CTLX")
        srd(40, 24, 256)
        A("v_mov_b32 v21, 0")
        A("s_mov_b32 s55, 0")
        A("s_mov_b32 s50, 0")
        LB("L_CTL")
        A("s_sleep 6")
        A(f"ds_read_b32 v22, v21 offset:{L_PRG}")
        A("s_add_u32 s50, s50, 1")
        A("s_waitcnt lgkmcnt(0)")
        A("v_readfirstlane_b32 s48, v22")
        A("s_cmp_gt_u32 s50, 0x40000")
        A("s_cbranch_scc1 L_CTLX")
        A("s_cmp_le_u32 s48, s55")
        A("s_cbranch_scc1 L_CTL")
        A("s_sub_u32 s55, s48, 1")
        A("s_and_b32 s49, s55, 3"); A("s_lshl_b32 s49, s49, 6"); A("s_lshr_b32 s54, s55, 2"); A("s_lshl2_add_u32 s49, s54, s49")
        A("s_mov_b64 exec, 1")
        A("v_mov_b32 v22, 1")
        A("buffer_atomic_add v22, v21, s[40:43], s49 offen sc0 sc1")
        A("s_waitcnt vmcnt(0)")
        A("v_readfirstlane_b32 s49, v22")
        A("s_mov_b32 s55, s48")
        A(f"s_cmp_ge_u32 s49, {tf}"); A("s_cselect_b32 s54, 1, 0")
        A(f"s_cmp_lt_u32 s49, {ts}"); A("s_cselect_b32 s54, 2, s54")
        A("v_mov_b32 v22, s54")
        A(f"ds_write_b32 v21, v22 offset:{L_MODE}")
        A("s_mov_b64 exec, -1")
        A(f"s_cmp_lt_u32 s55, {len(MS)}")
        A("s_cbranch_scc1 L_CTL")
        LB("L_CTLX")
    if woh:
        A("s_cmp_eq_u32 s3, 1")
        A("s_cbranch_scc0 L_E1G2")
        srd(44, 12, 6144 * 640 * 2)
        A("v_mul_u32_u24 v21, 6554, v0"); A("v_lshrrev_b32 v21, 16, v21")
        A("v_mul_u32_u24 v22, 10, v21"); A("v_sub_u32 v22, v0, v22")
        A("v_mul_u32_u24 v21, 1280, v21"); A("v_lshl_add_u32 v21, v22, 4, v21")
        A(f"s_mul_i32 s54, s58, {192*1280}"); A("s_mul_i32 s48, s59, 160"); A("s_add_u32 s54, s54, s48")
        A(f"s_mov_b32 s56, {L_WO}")
        A("s_mov_b32 s50, 32")
        pre = wopre
        while pre > 0:
            A(f"s_sleep {min(pre, 127)}"); pre -= 127
        A("s_mov_b32 exec_hi, 0x0fffffff")
        LB("L_WOL")
        A("s_mov_b32 m0, s56")
        A(f"s_waitcnt vmcnt({woh-1})")
        A(f"buffer_load_dwordx4 v21, s[44:47], s54 offen {wo_flags} lds")
        A("s_add_u32 s56, s56, 960"); A("s_add_u32 s54, s54, 7680")
        A("s_sub_u32 s50, s50, 1"); A("s_cmp_lg_u32 s50, 0"); A("s_cbranch_scc1 L_WOL")
        A("s_mov_b32 exec_hi, -1")
        A("s_waitcnt vmcnt(0)")
        LB("L_E1G2")
    A("s_lshr_b32 s55, s3, 1")
    A("s_lshl_b32 s53, s58, 13"); A(f"s_add_u32 s53, s53, {E1_OFF}"); A("s_lshl_b32 s54, s55, 12"); A("s_add_u32 s53, s53, s54")
    A("s_mul_i32 s54, s55, 384")
    A("v_bfe_u32 v21, v0, 2, 2"); A("v_bfe_u32 v22, v0, 4, 1"); A("v_lshl_add_u32 v21, v21, 1, v22")
    A("v_and_b32 v22, 0x23, v0"); A("v_lshl_add_u32 v21, v21, 2, v22")
    A("v_lshl_add_u32 v21, v21, 1, s54")
    stamp(2)
    A("s_barrier")
    stamp(3)
    lds_ = [f"buffer_load_dwordx4 v[{64+4*k}:{67+4*k}], v19, s[32:35], s53 offen offset:{k*1024} sc1" for k in range(4)]
    poll("L_E1POLL", lds_, [67 + 4*k for k in range(4)], 8)
    for i in range(3):
        A(f"v_add_f32 v{64+i}, v{64+i}, v{68+i}"); A(f"v_add_f32 v{72+i}, v{72+i}, v{76+i}")
    for i in range(3):
        A(f"v_add_f32 v{64+i}, v{64+i}, v{72+i}")
    for i in range(3):
        A(f"v_cvt_pk_bf16_f32 v{64+i}, v{64+i}, v{64+i}")
        A(f"ds_write_b16 v21, v{64+i} offset:{L_OBF + 128*i}")
    A("s_waitcnt lgkmcnt(0)")
    stamp(4)
    A("s_barrier")
    A("s_branch L_fin")
    LB("L_H2_PRE")
    A(f"s_cmp_lt_u32 s2, {red_base}")
    A("s_cbranch_scc1 L_H2_IDLE")
    A(f"s_cmp_ge_u32 s2, {red_base+40}")
    A("s_cbranch_scc1 L_H2_IDLE")
    A(f"s_sub_u32 s55, s2, {red_base}")
    A("v_bfe_u32 v21, v0, 4, 1"); A("v_mul_u32_u24 v21, 1280, v21")
    A("v_and_b32 v22, 15, v0"); A("v_lshl_add_u32 v21, v22, 1, v21")
    A("s_lshl_b32 s54, s55, 5"); A("v_add_u32 v92, s54, v21")
    A("global_load_ushort v93, v92, s[4:5]")
    A("s_mul_i32 s53, s55, 6144"); A(f"s_add_u32 s53, s53, {G2_OFF}"); A("s_add_u32 s60, s53, 4096")
    lds_ = [f"buffer_load_dwordx4 v[{W+4*k}:{W+4*k+3}], v19, s[32:35], {'s53' if k < 4 else 's60'} offen offset:{(k&3)*1024} sc1" for k in range(6)]
    poll("L_G2POLL", lds_, [W + 4*k + 1 for k in range(6)] + [W + 4*k + 3 for k in range(6)], 8, sleep=64, pre=g2pre)
    def sum_pairs(n, B=None):
        B = W if B is None else B
        for k in range(1, n):
            A(f"v_add_f32 v{W}, v{B if k == 1 else W}, v{B+4*k}"); A(f"v_add_f32 v{W+2}, v{B+2 if k == 1 else W+2}, v{B+4*k+2}")
    def fin_pairs(W):
        A("s_nop 1")
        A(f"v_permlane16_swap_b32 v{W}, v{W+2}")
        A(f"v_add_f32 v{W}, v{W}, v{W+2}")
        A(f"v_mov_b32 v{W+2}, v{W}"); A("s_nop 1")
        A(f"v_permlane32_swap_b32 v{W+2}, v{W}")
        A(f"v_add_f32 v{W}, v{W}, v{W+2}")
        rne(W)
    sum_pairs(6); fin_pairs(W)
    A(f"v_mul_f32 v21, 0x{LOG2E ^ 0x80000000:08x}, v{W}")
    A("v_exp_f32 v21, v21"); A("s_nop 0")
    A("v_add_f32 v21, 1.0, v21")
    A("v_rcp_f32 v21, v21"); A("s_nop 0")
    A(f"v_mul_f32 v94, v{W}, v21")
    rne(94)
    A("v_lshlrev_b32 v93, 16, v93")
    A("s_lshl_b32 s53, s55, 13"); A(f"s_add_u32 s53, s53, {E2_OFF}"); A("s_add_u32 s60, s53, 4096")
    stamp(2)
    A("s_barrier")
    A("s_barrier")
    stamp(4)
    e2l = lambda B: [f"buffer_load_dwordx4 v[{B+4*k}:{B+4*k+3}], v19, s[32:35], {'s53' if k < 4 else 's60'} offen offset:{(k&3)*1024} sc1" for k in range(8)]
    if e2dual:
        def tchk(B):
            A(f"v_xor_b32 v8, s31, v{B+1}")
            rest = [B + 2*k + 1 for k in range(1, 16)]
            while rest:
                if len(rest) >= 2:
                    A(f"v_xor_b32 v9, s31, v{rest[0]}"); A(f"v_xor_b32 v10, s31, v{rest[1]}"); A("v_or3_b32 v8, v8, v9, v10"); rest = rest[2:]
                else:
                    A(f"v_xor_b32 v9, s31, v{rest[0]}"); A("v_or_b32 v8, v8, v9"); rest = rest[1:]
            A("v_cmp_ne_u32 vcc, 0, v8")
        WB_ = W + 32
        A("s_mov_b32 s50, 0")
        for ld in e2l(W): A(ld)
        A(f"s_sleep {e2dual}")
        LB("L_E2P")
        for ld in e2l(WB_): A(ld)
        A("s_add_u32 s50, s50, 1")
        A("s_waitcnt vmcnt(8)")
        tchk(W)
        A("s_cbranch_vccz L_E2A")
        for ld in e2l(W): A(ld)
        A("s_waitcnt vmcnt(8)")
        tchk(WB_)
        A("s_cmp_gt_u32 s50, 0x40000")
        A("s_cbranch_scc1 L_E2B")
        A("s_cbranch_vccnz L_E2P")
        LB("L_E2B")
        for k in range(1, 8):
            A(f"v_add_f32 v{WB_}, v{WB_}, v{WB_+4*k}"); A(f"v_add_f32 v{WB_+2}, v{WB_+2}, v{WB_+4*k+2}")
        A(f"v_mov_b32 v{W+64}, v{WB_}"); A(f"v_mov_b32 v{W+66}, v{WB_+2}")
        A("s_branch L_E2J")
        LB("L_E2A")
        for k in range(1, 8):
            A(f"v_add_f32 v{W+64}, v{W if k == 1 else W+64}, v{W+4*k}"); A(f"v_add_f32 v{W+66}, v{W+2 if k == 1 else W+66}, v{W+4*k+2}")
        LB("L_E2J")
        W_save = W
        W = W + 64
        fin_pairs(W)
    else:
        poll("L_E2POLL", e2l(W), [W + 4*k + 1 for k in range(8)] + [W + 4*k + 3 for k in range(8)], 8)
        sum_pairs(8); fin_pairs(W)
    A(f"v_mul_f32 v{W}, v{W}, v94")
    rne(W)
    A(f"v_add_f32 v{W}, v{W}, v93")
    A(f"v_cvt_pk_bf16_f32 v{W}, v{W}, v{W}")
    A("s_mov_b32 exec_hi, 0")
    A(f"global_store_short v92, v{W}, s[22:23]")
    if e2dual: W = W_save
    A("s_cmp_eq_u32 s55, 0")
    A("s_cbranch_scc0 L_fin")
    A("s_mov_b32 exec_lo, 1")
    A("v_mov_b32 v21, s31"); A(f"v_mov_b32 v22, {GEN_OFF}")
    A("buffer_store_dword v21, v22, s[32:35], 0 offen")
    A("s_branch L_fin")
    LB("L_H2_IDLE")
    A("s_barrier"); A("s_barrier")
    A("s_branch L_fin")
    LB("L_H0")
    if Z:
        A("s_lshl_b32 s61, s30, 5"); A("s_add_u32 s61, s61, s28")
        A("s_and_b32 s48, s29, 3"); A("s_cmp_lg_u32 s48, 0"); A("s_cbranch_scc1 L_H0_NI")
        A("s_lshl_b32 s48, s61, 7"); A(f"s_add_u32 s48, s48, {CNT_OFF}")
        A("v_mov_b32 v21, 0")
        A("s_mov_b64 exec, 1")
        A("buffer_store_dword v21, v21, s[32:35], s48 offen" + ("" if "aloc" in dbg else " sc1"))
        A("s_mov_b64 exec, -1")
        LB("L_H0_NI")
    A("v_and_b32 v21, 3, v0"); A("v_lshlrev_b32 v21, 4, v21")
    A("s_mov_b32 s50, 0")
    LB("L_MLPOLL")
    A("s_sleep 8")
    A(f"ds_read_b128 v[24:27], v21 offset:{L_ML}")
    A("s_add_u32 s50, s50, 1")
    A("s_waitcnt lgkmcnt(0)")
    A("v_cmp_eq_u32 vcc, 0, v26")
    A("s_cmp_gt_u32 s50, 0x40000")
    A("s_cbranch_scc1 L_MLPOLL_x")
    A("s_cbranch_vccnz L_MLPOLL")
    LB("L_MLPOLL_x")
    def quad(op, d, s):
        A(f"{op}_dpp v{d}, v{s}, v{s} quad_perm:[1,0,3,2] {DPPF}"); A("s_nop 1")
        A(f"{op}_dpp v{d}, v{d}, v{d} quad_perm:[2,3,0,1] {DPPF}")
    quad("v_max_f32", 28, 24)
    A("v_sub_f32 v24, v24, v28"); A(f"v_mul_f32 v24, 0x{LOG2E:08x}, v24"); A("v_exp_f32 v24, v24"); A("s_nop 0")
    A("v_mul_f32 v25, v24, v25"); A("s_nop 1")
    quad("v_add_f32", 29, 25)
    if not qfast:
        A("s_getreg_b32 s57, hwreg(HW_REG_XCC_ID)"); A("s_and_b32 s57, s57, 15")
    A("v_mov_b32 v32, v28"); A("v_mov_b32 v33, v29"); A("v_mov_b32 v34, s57"); A("v_mov_b32 v35, s31")
    A("s_lshl_b32 s53, s28, 10"); A(f"s_add_u32 s53, s53, {LX_OFF}")
    A("s_lshl_b32 s54, s29, 7"); A("s_add_u32 s54, s54, s53")
    A("s_waitcnt vmcnt(0)")
    A("s_mov_b64 exec, 0xff")
    if qfast:
        A("s_cmp_eq_u32 s57, 1")
        A("s_cbranch_scc1 L_LX_F")
        A("buffer_store_dwordx4 v[32:35], v19, s[32:35], s54 offen sc1")
        A("s_branch L_LX_G")
        LB("L_LX_F")
        A("buffer_store_dwordx4 v[32:35], v19, s[32:35], s54 offen")
        LB("L_LX_G")
    else:
        A("buffer_store_dwordx4 v[32:35], v19, s[32:35], s54 offen sc1")
    A("s_mov_b64 exec, -1")
    if qfast:
        A("s_lshl_b32 s60, s30, 9"); A("s_add_u32 s53, s53, s60")
        A("v_and_b32 v22, 3, v0"); A("v_lshlrev_b32 v22, 7, v22")
    else:
        A("v_and_b32 v22, 7, v0"); A("v_lshlrev_b32 v22, 7, v22")
    poll("L_LXPOLL", ["buffer_load_dwordx4 v[36:39], v22, s[32:35], s53 offen sc1"], [39], 8, sleep=32, pre=lxpre)
    quad("v_max_f32", 28, 36)
    if not qfast: A("v_cmp_ne_u32 vcc, s57, v38")
    A("v_sub_f32 v36, v36, v28"); A(f"v_mul_f32 v36, 0x{LOG2E:08x}, v36")
    A("v_exp_f32 v36, v36"); A("s_lshl_b32 s60, s30, 2")
    A("v_mul_f32 v36, v36, v37"); A("s_nop 1")
    quad("v_add_f32", 29, 36)
    if qfast:
        A("v_sub_f32 v32, v32, v28"); A("v_rcp_f32 v29, v29")
    else:
        A("v_readlane_b32 s48, v28, s60"); A("v_readlane_b32 s49, v29, s60")
        A("s_cmp_eq_u64 vcc, 0"); A("s_cselect_b32 s57, 1, 0")
        A("v_subrev_f32 v32, s48, v32"); A("v_rcp_f32 v29, s49")
    A(f"v_mul_f32 v32, 0x{LOG2E:08x}, v32")
    A("v_exp_f32 v32, v32"); A("v_mul_f32 v24, v24, v29")
    A("v_mul_f32 v24, v24, v32"); A("s_nop 1")
    if fast: assert amap == omap
    if Z: A("v_lshlrev_b32 v21, 3, v21")
    if Z:
        A("v_mov_b32 v25, 1")
        A("v_lshrrev_b32 v21, 4, v21")
        A(f"ds_write_b64 v21, v[24:25] offset:{L_W}")
        A("v_lshrrev_b32 v21, 4, v0"); A("v_lshlrev_b32 v21, 3, v21")
        A(f"ds_read_b32 v26, v21 offset:{L_W}")
        A("v_lshlrev_b32 v21, 2, v0")
        for z in range(Z): A(f"ds_read_b32 v{40+2*z}, v21 offset:{L_PP + 256*z}")
        A(f"s_mul_i32 s53, s61, {96*128}"); A(f"s_add_u32 s53, s53, {PX_OFF}")
        A("s_and_b32 s48, s29, 3"); A("s_lshl_b32 s48, s48, 9"); A("s_add_u32 s53, s53, s48")
        A("v_lshlrev_b32 v21, 3, v0")
        A("s_waitcnt lgkmcnt(0)")
        for z in range(Z):
            A(f"v_mul_f32 v{40+2*z}, v{40+2*z}, v26")
            A(f"v_cvt_pk_bf16_f32 v{40+2*z}, v{40+2*z}, v{40+2*z}")
            A(f"v_mov_b32 v{41+2*z}, s31")
            A(f"buffer_store_dwordx2 v[{40+2*z}:{41+2*z}], v21, s[32:35], s53 offen" + ("" if "aloc" in dbg else " sc1"))
            if z < Z - 1: A("s_add_u32 s53, s53, 2048")
    else:
        for s in range(4):
            A(f"v_mov_b32_dpp v{28+s}, v24 quad_perm:[{s},{s},{s},{s}] {DPPF}")
    A("v_lshlrev_b32 v21, 2, v0")
    A("s_lshl_b32 s54, s28, 13"); A(f"s_add_u32 s54, s54, {E1_OFF}"); A("s_lshl_b32 s53, s29, 10"); A("s_add_u32 s54, s54, s53")
    A("v_mov_b32 v35, s31")
    A("s_mov_b32 s55, 4")
    stamp(2)
    A("s_barrier")
    stamp(3)
    if fast: A("s_cmp_eq_u32 s57, 1")
    po = L_PART // 256
    assert L_PART % 256 == 0
    for m in range(12):
        A(f"ds_read2st64_b32 v[{40+2*m}:{41+2*m}], v21 offset0:{po+2*m} offset1:{po+2*m+1}")
    for e in range(24):
        k, i = divmod(e, 3)
        if e % 6 == 0: A(f"s_waitcnt lgkmcnt({9 - 3*(e//6)})")
        if Z:
            if k == 1: A(f"v_add_f32 v{32+i}, v{40+i}, v{40+e}")
            elif k > 1: A(f"v_add_f32 v{32+i}, v{32+i}, v{40+e}")
        elif k == 0: A(f"v_mul_f32 v{32+i}, v28, v{40+e}")
        else: A(f"v_fmac_f32 v{32+i}, v{28 + k//2}, v{40+e}")
    if fast:
        A("s_cbranch_scc1 L_E1_FAST")
    A("buffer_store_dwordx4 v[32:35], v19, s[32:35], s54 offen sc1")
    A("s_branch L_WO_PRE")
    if fast:
        LB("L_E1_FAST")
        A("buffer_store_dwordx4 v[32:35], v19, s[32:35], s54 offen")
        A("s_branch L_WO_PRE")

    LB("L_STREAM")
    A(f"s_load_dword s31, s[26:27], {GEN_OFF}")
    for idx in range(max(WIN, IB), 12): issue(idx)
    srd(40, 8, 100663296); srd(44, 12, 6144 * 640 * 2); srd(32, 26, WS_BYTES)
    wgmap(omap, 58, 59)
    A("v_bfe_u32 v4, v0, 3, 1"); A("v_lshrrev_b32 v5, 4, v0"); A("v_lshl_add_u32 v4, v4, 3, v5")
    A("v_mul_u32_u24 v2, 384, v4"); A("v_and_b32 v5, 7, v0"); A("v_lshl_add_u32 v2, v5, 4, v2")
    A("v_mul_u32_u24 v76, 6554, v0"); A("v_lshrrev_b32 v76, 16, v76")
    A("v_mul_u32_u24 v5, 10, v76"); A("v_sub_u32 v5, v0, v5")
    A("v_mul_u32_u24 v76, 1280, v76"); A("v_lshl_add_u32 v76, v5, 4, v76")
    A("s_mul_i32 s54, s58, 192"); A("s_mul_i32 s48, s55, 48"); A("s_add_u32 s54, s54, s48"); A("s_mul_i32 s54, s54, 1280")
    A("s_mul_i32 s48, s59, 160"); A("s_add_u32 s54, s54, s48")
    A(f"s_mul_i32 s56, s55, 7680"); A(f"s_add_u32 s56, s56, {L_WO}")
    A("v_lshrrev_b32 v5, 5, v0"); A("v_mul_u32_u24 v77, 768, v5"); A("v_and_b32 v5, 7, v0"); A("v_lshl_add_u32 v77, v5, 5, v77")
    A("v_bfe_u32 v5, v0, 4, 1"); A("v_lshl_add_u32 v77, v5, 4, v77")
    A("s_mul_i32 s48, s55, 1536"); A("v_add_u32 v77, s48, v77")
    amasks(4, 78)
    if Z:
        A("s_lshl_b32 s61, s30, 5"); A("s_add_u32 s61, s61, s28")
        A("s_lshl_b32 s60, s61, 7"); A(f"s_add_u32 s60, s60, {CNT_OFF}")
        A(f"s_mul_i32 s62, s61, {96*128}"); A(f"s_add_u32 s62, s62, {PX_OFF}")
        A(f"s_mul_i32 s61, s61, 1572864"); A(f"s_add_u32 s61, s61, {NS*6144}")
    BQ = 28
    for r in range(24): A(f"v_mov_b32 v{BQ+r}, 0")
    A("v_mov_b32 v79, 0xff800000")
    if ctl: A("v_mov_b32 v82, 0")
    for idx in range(max(12, IB), R): issue(idx)
    stamp(1)
    A("s_barrier")
    A("s_mov_b32 exec_lo, 0x000f000f"); A("s_mov_b32 exec_hi, 0x00f000f0")
    for i in range(3): A(f"ds_read_b128 v[{BQ+4*i}:{BQ+4*i+3}], v3 offset:{L_Q + 128*i}")
    A("s_mov_b32 exec_lo, 0x0f000f00"); A("s_mov_b32 exec_hi, 0xf000f000")
    for i in range(3): A(f"ds_read_b128 v[{BQ+12+4*i}:{BQ+12+4*i+3}], v3 offset:{L_Q + 128*i}")
    A("s_mov_b64 exec, -1")
    A("s_waitcnt lgkmcnt(0)")
    A(f"s_add_u32 s31, s31, 0x{TAGC:08x}")
    stamp(2)
    S = 52
    def extract(t):
        a = 8 + 4 * (t & 1)
        v = S + t
        A(f"v_mov_b32_dpp v{v}, v{a} quad_perm:[0,0,0,0] {DPPF}")
        for k in (1, 2, 3):
            A(f"v_add_f32_dpp v{v}, v{a+k}, v{v} quad_perm:[{k},{k},{k},{k}] {DPPF}")
        rne(v)
        A(f"v_mul_f32 v{v}, 0x{SCALE:08x}, v{v}")
        rne(v)
        A(f"v_max_f32 v79, v79, v{v}")
    n = len(loads)
    def pexp(t):
        v = S + t
        A(f"v_sub_f32 v{v}, v{v}, v79")
        A(f"v_mul_f32 v{v}, 0x{LOG2E:08x}, v{v}")
        A(f"v_exp_f32 v{v}, v{v}")
        A("s_nop 0")
        if t == 0: A(f"v_mov_b32 v80, v{v}")
        else: A(f"v_add_f32 v80, v80, v{v}")
        if not Z or t < NS - 1: A(f"v_cvt_pk_bf16_f32 v{v}, v{v}, v{v}")
    def abuildv(p):
        A(f"v_and_b32 v68, v{p}, v4"); A(f"v_and_b32 v69, v{p}, v5")
        A(f"v_and_b32_dpp v70, v{p}, v6 row_half_mirror {DPPF}"); A(f"v_and_b32_dpp v71, v{p}, v7 row_half_mirror {DPPF}")
        A(f"v_and_b32_dpp v72, v{p}, v4 row_half_mirror {DPPF}"); A(f"v_and_b32_dpp v73, v{p}, v5 row_half_mirror {DPPF}")
        A(f"v_and_b32 v74, v{p}, v6"); A(f"v_and_b32 v75, v{p}, v7")
    def target(idx):
        fl = LK if idx < 96 else WIN
        if ctl: fl = max(fl, WH)
        if WK and WKa - WK <= idx < WKb - WK: fl = max(fl, WK)
        if SPN and idx >= len(loads) - SPN - SPW: fl = SPW
        return max(fl, R - max(0, idx - WIN + 1) // 2)
    ncons = n - 6 if Z else n
    for idx in range(ncons):
        ten, t, s, i = loads[idx]
        r = slot(idx)
        if ten == "V" and s == 0 and i == 0:
            if t == 0:
                A("s_nop 7")
                extract(15)
                A("s_nop 1")
                A(f"v_max_f32_dpp v79, v79, v79 row_half_mirror {DPPF}"); A("s_nop 1")
                A(f"v_max_f32_dpp v79, v79, v79 row_mirror {DPPF}")
                xrow_reduce("v_max_f32", 79, 80)
                pexp(0)
                if "st_first" not in dbg: stamp(3)
                A("s_nop 0")
            abuildv(S + t)
        after = issued[0] - pos[idx] - 1
        if after < max(WIN, WK, WB if BN else 0, WH if ctl else 0, SPW if SPN else 0): A(f"s_waitcnt vmcnt({after})")
        elif ten == "V" and s == 0 and i == 0: A("s_nop 0")
        if ten == "K":
            mf(8 + 4 * (t & 1), r, BQ + 12 * s + 4 * i, s == 0 and i == 0)
        else:
            mf(16 + 4 * i, 68 + 4 * s, r, t == 0 and s == 0)
        tail_d = [p for p in range(NTOT) if ops[p][0] != "L" and p < len(ops) - (8 - nd if (not Z and not woh) else 0)]
        def ahead():
            return issued[0] - pos[idx] - sum(1 for p in tail_d if pos[idx] < p < issued[0] and ops[p][0] == "D")
        while issued[0] < NTOT and ahead() <= target(idx) and issued[0] - R <= idx:
            issue(issued[0])
        if ten == "K" and s == 1 and i == 2 and t > 0:
            A("s_nop 1")
            extract(t - 1)
        if ctl and s == 0 and i == 0:
            A(f"ds_read_b32 v83, v82 offset:{L_MODE}")
        if ctl and s == 1 and i == 1 and idx > MS[0]:
            A("s_waitcnt lgkmcnt(0)")
            A("v_readfirstlane_b32 s57, v83")
            A("s_nop 0")
            A("s_cmp_eq_u32 s57, 1"); A("s_cselect_b64 vcc, -1, 0")
            ctl_on[0] = True
            setflags()
        if ctl and idx in MS:
            A(f"v_mov_b32 v81, {MS.index(idx)+1}")
            A(f"ds_write_b32 v82, v81 offset:{L_PRG}")
        vi = idx - 96
        if not Z and vi == chk * 6 - 1 and "st_first" not in dbg: stamp(6)
        if 0 <= vi < 15:
            pexp(vi + 1)
        if vi == 15:
            A(f"v_add_f32_dpp v80, v80, v80 row_half_mirror {DPPF}"); A("s_nop 1")
            A(f"v_add_f32_dpp v80, v80, v80 row_mirror {DPPF}")
            xrow_reduce("v_add_f32", 80, 81)
            if Z:
                A("v_bfe_u32 v14, v0, 2, 2"); A("v_lshrrev_b32 v15, 4, v0"); A("v_lshl_add_u32 v14, v14, 2, v15")
                A("s_lshl_b32 s48, s55, 6"); A("v_lshl_add_u32 v15, v14, 2, s48")
                A("v_lshlrev_b32 v14, 3, v14")
                A("v_mov_b32 v13, 0")
                for z in range(Z): A(f"ds_write_b32 v15, v{S+NS+z} offset:{L_PP + 256*z}")
            A("v_mov_b32 v8, v79"); A("v_mov_b32 v9, v80"); A("v_mov_b32 v10, 1"); A("v_mov_b32 v11, 1")
            A("s_lshl_b32 s48, s55, 4"); A("v_mov_b32 v81, s48")
            A(f"ds_write_b128 v81, v[8:11] offset:{L_ML}")
            if Z: A("v_lshrrev_b32 v81, 1, v81")
            setflags()
    if Z:
        while issued[0] < NTOT: issue(issued[0])
        if stamps: A("s_mov_b64 s[68:69], s[64:65]")
        A(f"v_mul_f32 v{PB}, v{S+NS-1}, v82")
        A(f"v_mov_b32 v{PB+1}, s31")
        A(f"v_cvt_pk_bf16_f32 v{PB}, v{PB}, v{PB}")
        A("s_nop 3")
        for k in range(12): A(f"v_mul_f32 v{16+k}, v{16+k}, v82")
        def pcheck(lab, P, sreg):
            A(f"v_cmp_ne_u32 vcc, s31, v{P+1}")
            A(f"s_cbranch_vccz {lab}_ok")
            A("s_mov_b32 s50, 0")
            LB(lab + "_r")
            A("s_sleep 4")
            A(f"buffer_load_dwordx2 v[{P}:{P+1}], v14, s[32:35], {sreg} offen sc1")
            A("s_add_u32 s50, s50, 1")
            A("s_waitcnt vmcnt(0)")
            A(f"v_cmp_ne_u32 vcc, s31, v{P+1}")
            A("s_cmp_gt_u32 s50, 0x40000")
            A(f"s_cbranch_scc1 {lab}_ok")
            A(f"s_cbranch_vccnz {lab}_r")
            LB(lab + "_ok")
        def half(nm, X, PX_, sx, Y, PY, sy, flag):
            LB(nm)
            A("s_waitcnt vmcnt(7)")
            A(f"v_readfirstlane_b32 s48, v{TK}")
            A(f"s_mov_b32 s63, {flag}")
            A(f"s_cmp_ge_u32 s48, {NP}")
            A("s_cbranch_scc1 L_DEXIT")
            claim()
            if stamps: A("s_add_u32 s68, s68, 100"); A("s_addc_u32 s69, s69, 0")
            A(f"s_lshl_b32 {sx}, s48, 7"); A(f"s_add_u32 {sx}, {sx}, s62")
            A("s_and_b32 s49, s48, 15"); A("s_mul_i32 s49, s49, 98304"); A("s_lshr_b32 s48, s48, 4"); A("s_mul_i32 s48, s48, 6144")
            A("s_add_u32 s53, s49, s48"); A("s_add_u32 s53, s53, s61")
            A("s_waitcnt vmcnt(7)")
            pcheck(nm + "_p", PY, sy)
            A(f"buffer_load_dwordx2 v[{PX_}:{PX_+1}], v14, s[32:35], {sx} offen sc1")
            abuildv(PY)
            for k in range(6):
                sg, i = divmod(k, 3)
                A("s_waitcnt vmcnt(7)")
                mf(16 + 4 * i, 68 + 4 * sg, Y + 4 * k, False)
                A(f"buffer_load_dwordx4 v[{X+4*k}:{X+4*k+3}], v2, s[40:43], s53 offen offset:{sg*1536 + i*128} {vf}")
        half("L_DA", SETA, PA, "s51", SETB, PB, "s52", 0)
        half("L_DB", SETB, PB, "s52", SETA, PA, "s51", 1)
        A("s_branch L_DA")
        LB("L_DEXIT")
        if not woh:
            for k in range(8): dma(k)
        DX = 0 if woh else 8
        A("s_cmp_eq_u32 s63, 0")
        A("s_cbranch_scc1 L_DRB")
        def drain(nm, Y, PY, sy):
            LB(nm)
            A(f"s_waitcnt vmcnt({6+DX})")
            pcheck(nm + "_p", PY, sy)
            abuildv(PY)
            for k in range(6):
                sg, i = divmod(k, 3)
                A(f"s_waitcnt vmcnt({5+DX-k})")
                mf(16 + 4 * i, 68 + 4 * sg, Y + 4 * k, False)
        drain("L_DRA", SETA, PA, "s51")
        A("s_branch L_DEND")
        drain("L_DRB", SETB, PB, "s52")
        LB("L_DEND")
    A("s_mov_b32 exec_lo, 0x00ff00ff"); A("s_mov_b32 exec_hi, 0xff00ff00")
    A("s_nop 5")
    for i in range(3):
        A(f"ds_write_b128 v77, v[{16+4*i}:{19+4*i}] offset:{L_PART + 256*i}")
    A("s_mov_b64 exec, -1")
    while issued[0] < NTOT: issue(issued[0], nowait=True)
    A("s_waitcnt lgkmcnt(0)")
    stamp(4)
    A("s_barrier")
    LB("L_WO_PRE")
    A("v_bfe_u32 v1, v0, 1, 1"); A("v_mul_u32_u24 v1, 384, v1"); A("v_lshrrev_b32 v2, 4, v0"); A("v_lshl_add_u32 v1, v2, 4, v1")
    A("v_lshrrev_b32 v2, 2, v0"); A("v_mul_u32_u24 v2, 160, v2")
    A("v_and_b32 v3, 3, v0"); A("v_lshl_add_u32 v2, v3, 3, v2")
    A("s_lshl_b32 s48, s55, 5"); A("v_add_u32 v2, s48, v2")
    A("v_lshlrev_b32 v3, 4, v0")
    A("s_mul_i32 s48, s59, 5"); A("s_add_u32 s48, s48, s55"); A("s_lshl_b32 s48, s48, 5"); A("s_add_u32 s48, s48, s58")
    A("s_lshl_b32 s48, s48, 8"); A(f"s_add_u32 s48, s48, {E2_OFF}")
    A("s_cmp_eq_u32 s55, 4")
    A("s_cbranch_scc1 L_WO_B3")
    A("s_waitcnt vmcnt(0)")
    LB("L_WO_B3")
    stamp(5)
    A("s_barrier")
    for s in range(6):
        A(f"ds_read_b128 v[{96+8*s}:{99+8*s}], v1 offset:{L_OBF + 64*s}")
        A(f"ds_read_b64_tr_b16 v[{100+8*s}:{101+8*s}], v2 offset:{L_WO + 5120*s}")
        A(f"ds_read_b64_tr_b16 v[{102+8*s}:{103+8*s}], v2 offset:{L_WO + 5120*s + 2560}")
    for s in range(6):
        A(f"s_waitcnt lgkmcnt({min(15, 3*(5-s))})")
        mf(8, 96 + 8*s, 100 + 8*s, s == 0)
    A("s_mov_b32 exec_lo, 0xffff"); A("s_mov_b32 exec_hi, 0")
    A("s_nop 5")
    A("v_mov_b32 v9, s31"); A("v_mov_b32 v11, s31")
    A("buffer_store_dwordx4 v[8:11], v3, s[32:35], s48 offen sc1")
    LB("L_fin")
    if stamps:
        stamp(7)
        A("s_mov_b64 exec, 1")
        A("s_waitcnt lgkmcnt(0)")
        A("s_lshl_b32 s48, s2, 3"); A("s_add_u32 s48, s48, s3"); A("s_lshl_b32 s48, s48, 6"); A(f"s_add_u32 s48, s48, {STAMP_OFF}")
        A("v_mov_b32 v1, 0")
        for q in range(4):
            for k in range(4): A(f"v_mov_b32 v{4+k}, s{64+4*q+k}")
            A(f"buffer_store_dwordx4 v[4:7], v1, s[32:35], s48 offen offset:{16*q}")
            A("s_nop 1")
    LB("L_end")
    A("s_endpgm")
    if sfirst:
        ih = L.index("L_HELP:"); i_s = L.index("L_STREAM:"); ie = L.index("L_end:")
        assert L[ih-1].strip() == "s_branch L_STREAM"
        helper = L[ih:i_s]; stream = L[i_s:ie+2]
        L[ih-1:] = stream + helper
    L.append("L_code_end:")
    L.append("  s_endpgm")
    L.append('.section .rodata,"a"'); L.append(".p2align 6"); L.append(f".amdhsa_kernel {KNAME}")
    for d in ["next_free_vgpr 256", "next_free_sgpr 96", "accum_offset 256", "group_segment_fixed_size 0", "kernarg_size 96",
              "user_sgpr_count 2", "user_sgpr_kernarg_segment_ptr 1", "system_sgpr_workgroup_id_x 1", "float_denorm_mode_32 3"]:
        L.append("  .amdhsa_" + d)
    L.append(".end_amdhsa_kernel")
    return "\n".join(L) + "\n"

if __name__ == "__main__":
    ap = argparse.ArgumentParser()
    ap.add_argument("-o", default="k.s")
    ap.add_argument("--R", type=int, default=42)
    ap.add_argument("--amap", default="xcd")
    ap.add_argument("--Z", type=int, default=0)
    ap.add_argument("--e2dual", type=int, default=0)
    ap.add_argument("--BN", type=int, default=0)
    ap.add_argument("--WB", type=int, default=6)
    ap.add_argument("--sfirst", type=int, default=1)
    ap.add_argument("--cpf", type=int, default=0)
    ap.add_argument("--IB", type=int, default=0)
    ap.add_argument("--gfast", type=int, default=1)
    ap.add_argument("--qfast", type=int, default=1)
    ap.add_argument("--ctl", type=int, default=0)
    ap.add_argument("--WH", type=int, default=7)
    ap.add_argument("--WL", type=int, default=4)
    ap.add_argument("--tf", type=int, default=160)
    ap.add_argument("--ts", type=int, default=96)
    ap.add_argument("--MS", default="48,78,108,132,156")
    ap.add_argument("--WK", type=int, default=0)
    ap.add_argument("--WKa", type=int, default=0)
    ap.add_argument("--WKb", type=int, default=0)
    ap.add_argument("--nd", type=int, default=4)
    ap.add_argument("--nv", type=int, default=18)
    ap.add_argument("--fast", type=int, default=1)
    ap.add_argument("--woh", type=int, default=0)
    ap.add_argument("--wopre", type=int, default=0)
    ap.add_argument("--SPN", type=int, default=12)
    ap.add_argument("--SPW", type=int, default=10)
    ap.add_argument("--chk", type=int, default=9)
    ap.add_argument("--lxpre", type=int, default=20)
    ap.add_argument("--qmap", default="xcd")
    ap.add_argument("--g1sh", type=int, default=0)
    ap.add_argument("--g1pre", type=int, default=300)
    ap.add_argument("--omap", default="xcd")
    ap.add_argument("--stamps", action="store_true")
    ap.add_argument("--wo", default="nt")
    ap.add_argument("--w", default="nt")
    ap.add_argument("--WIN", type=int, default=5)
    ap.add_argument("--LK", type=int, default=10)
    ap.add_argument("--qsleep", type=int, default=20)
    ap.add_argument("--dbg", default="")
    ap.add_argument("--HW", type=int, default=4)
    ap.add_argument("--g2pre", type=int, default=480)
    ap.add_argument("--kf", default="nt")
    ap.add_argument("--vf", default="nt")
    a = ap.parse_args()
    open(a.o, "w").write(gen(R=a.R, IB=a.IB, sfirst=a.sfirst, cpf=a.cpf, e2dual=a.e2dual, BN=a.BN, WB=a.WB, gfast=a.gfast, qfast=a.qfast, ctl=a.ctl, WH=a.WH, WL=a.WL, tf=a.tf, ts=a.ts, MS=tuple(int(x) for x in a.MS.split(',')), WK=a.WK, WKa=a.WKa, WKb=a.WKb, nd=a.nd, nv=a.nv, fast=a.fast, woh=a.woh, wopre=a.wopre, SPN=a.SPN, SPW=a.SPW, chk=a.chk, Z=a.Z, lxpre=a.lxpre, HW=a.HW, g2pre=a.g2pre, qmap=a.qmap, g1sh=a.g1sh, g1pre=a.g1pre, amap=a.amap, omap=a.omap, stamps=a.stamps, wo_flags=a.wo, w_flags=a.w, WIN=a.WIN, LK=a.LK,
                             qsleep=a.qsleep, dbg=tuple(a.dbg.split(',')), kf=a.kf.replace('+', ' '), vf=a.vf.replace('+', ' ')))
```
